```python
import torch

def _softmax(x, axis=-1):
    return torch.softmax(x, dim=axis)
def _gelu(x):
    return torch.nn.functional.gelu(x, approximate="tanh")
def _silu(x):
    return torch.nn.functional.silu(x)
def _sigmoid(x):
    return torch.sigmoid(x)
def _layernorm(x, axis=-1, eps=1e-5):
    m = x.mean(dim=axis, keepdim=True)
    v = x.var(dim=axis, keepdim=True, unbiased=False)
    return (x - m) / torch.sqrt(v + eps)
def _scatter_add(tgt, idx, src, axis=0):
    return tgt.clone().index_add_(axis, idx, src)
def _segment_sum(src, seg, n):
    out = torch.zeros((n,) + src.shape[1:], dtype=src.dtype)
    return out.index_add_(0, seg, src)
def _pad(x, pw):
    flat = tuple(v for pair in reversed(pw) for v in pair)
    return torch.nn.functional.pad(x, flat)

kernel_name = 'interleave_layers__ssm_conv_h3__glu_gated_geglu__prompt'

def setup_inputs():

    _w = (lambda a: (lambda t: t.to(torch.bfloat16) if t.is_floating_point() else t)(torch.as_tensor(a)))
    def _A_setup():
        B, S, D = 1, 2048, 640
        ks = 4
        return {
            "q": _w((lambda *s: torch.randn(*s, dtype=torch.bfloat16) * 0.05)(B, S, D)),
            "k": _w((lambda *s: torch.randn(*s, dtype=torch.bfloat16) * 0.2)(B, S, D)),
            "v": _w((lambda *s: torch.randn(*s, dtype=torch.bfloat16) * 0.2)(B, S, D)),
            "shift_k": _w((lambda *s: torch.randn(*s, dtype=torch.bfloat16) * 0.2)(D, ks) * 0.5),
            "ssm_k": _w((lambda *s: torch.randn(*s, dtype=torch.bfloat16) * 0.8)(D, S) * (1.0 / S ** 0.5)),
            "ssm_D": _w((lambda *s: torch.randn(*s, dtype=torch.bfloat16) * 0.2)(D)),
        }
    _A_in = _A_setup()

    def _B_setup():
        B, S, Dm, Df = 1, 2048, 640, 1728
        return {
            "x": _w((lambda *s: torch.randn(*s, dtype=torch.bfloat16) * 0.05)(B, S, Dm)),
            "w_gate": _w((lambda *s: torch.randn(*s, dtype=torch.bfloat16) * 0.4)(Dm, Df) * (Dm ** -0.5)),
            "w_up": _w((lambda *s: torch.randn(*s, dtype=torch.bfloat16) * 0.4)(Dm, Df) * (Dm ** -0.5)),
            "w_down": _w((lambda *s: torch.randn(*s, dtype=torch.bfloat16) * 0.4)(Df, Dm) * (Df ** -0.5)),
        }
    _B_in = _B_setup()

    return {
        "A_q": _A_in["q"],
        "A_k": _A_in["k"],
        "A_v": _A_in["v"],
        "A_shift_k": _A_in["shift_k"],
        "A_ssm_k": _A_in["ssm_k"],
        "A_ssm_D": _A_in["ssm_D"],
        "B_x": _B_in["x"],
        "B_w_gate": _B_in["w_gate"],
        "B_w_up": _B_in["w_up"],
        "B_w_down": _B_in["w_down"],
    }

def reference(A_q, A_k, A_v, A_shift_k, A_ssm_k, A_ssm_D, B_x, B_w_gate, B_w_up, B_w_down):
    def _A_ref(q, k, v, shift_k, ssm_k, ssm_D):
        B, S, D = q.shape
        ks = shift_k.shape[-1]
        k_pad = _pad(k, ((0, 0), (ks - 1, 0), (0, 0)))
        k_shift = torch.zeros_like(k)
        for t in range(ks):
            k_shift = k_shift + k_pad[:, t:t + S, :] * shift_k[:, ks - 1 - t][None, None, :]
        kv = k_shift * v
        L = 2 * S
        kv_pad = _pad(kv, ((0, 0), (0, S), (0, 0)))
        kf_pad = _pad(ssm_k, ((0, 0), (0, S)))
        kv_f = (lambda x, axes=(-2,-1): torch.fft.rfft2(x.float(), dim=axes))(kv_pad[:, None, :, :], axes=(1, 2))
        kf_f = (lambda x, axes=(-2,-1): torch.fft.rfft2(x.float(), dim=axes))(kf_pad[:, None, :], axes=(1, 2))
        kf_f = (lambda x, *d: x.permute(*d))(kf_f, 1, 2, 0)
        y_f = kv_f * kf_f[None, :, :, :]
        y = (lambda x, s, axes=(-2,-1): torch.fft.irfft2(x, s=s, dim=axes).to(torch.bfloat16))(y_f, (1, L), axes=(1, 2))[:, 0, :S, :]
        y = y + kv * ssm_D[None, None, :]
        return q * y

    def _B_ref(x, w_gate, w_up, w_down):
        g = torch.einsum("bsd,df->bsf", x, w_gate)
        u = torch.einsum("bsd,df->bsf", x, w_up)
        h = _gelu(g) * u
        return torch.einsum("bsf,fd->bsd", h, w_down)

    x = A_q
    x = x + _A_ref(_layernorm(x, axis=-1), A_k, A_v, A_shift_k, A_ssm_k, A_ssm_D)
    x = x + _B_ref(_layernorm(x, axis=-1), B_w_gate, B_w_up, B_w_down)
    x = x + _A_ref(_layernorm(x, axis=-1), A_k, A_v, A_shift_k, A_ssm_k, A_ssm_D)
    x = x + _B_ref(_layernorm(x, axis=-1), B_w_gate, B_w_up, B_w_down)
    return x
```

```python
import re

NAME = "interleave_layers__ssm_conv_h3__glu_gated_geglu__prompt"
HEADER = open("cdna_kernels/%s.s.ref" % NAME).read().split("; Override launch")[0]

KA = dict(q=0, k=8, v=16, shift=24, ssmk=32, ssmd=40, bx=48, wg=56, wu=64, wd=72, out=80, dbg=88, ws=96)
S, D, F = 2048, 640, 1728
NB = dict(q=S * D * 2, k=S * D * 2, v=S * D * 2, shift=D * 4 * 2, ssmk=D * S * 2, ssmd=D * 2,
          wg=D * F * 2, wu=D * F * 2, wd=F * D * 2, out=S * D * 2, dbg=256, ws=268435456)


class Asm:
    def __init__(self):
        self.launches = []
        self.text = []
        self.desc = []
        self.uid = 0

    def __call__(self, s):
        for line in s.strip("\n").split("\n"):
            self.text.append("    " + line.strip() if not line.strip().endswith(":") else line.strip())

    def label(self, base):
        self.uid += 1
        return "L_%s_%d" % (base, self.uid)

    def launch(self, kernel, grid, block, lds=0):
        self.launches.append("; @launch kernel=%s grid=(%d,1,1) block=(%d,1,1) lds=%d" % (kernel, grid, block, lds))

    def begin(self, kernel):
        self.text += [".globl %s" % kernel, ".p2align 8", ".type %s,@function" % kernel, "%s:" % kernel]

    def end(self, kernel, vgpr=128, sgpr=96, accum=None):
        if accum is None:
            accum = min(256, (vgpr + 3) // 4 * 4)
        self.desc += [".p2align 6", ".amdhsa_kernel %s" % kernel,
                      "  .amdhsa_next_free_vgpr %d" % vgpr,
                      "  .amdhsa_next_free_sgpr %d" % sgpr,
                      "  .amdhsa_accum_offset %d" % accum,
                      "  .amdhsa_group_segment_fixed_size 0",
                      "  .amdhsa_kernarg_size 104",
                      "  .amdhsa_user_sgpr_count 2",
                      "  .amdhsa_user_sgpr_kernarg_segment_ptr 1",
                      "  .amdhsa_system_sgpr_workgroup_id_x 1",
                      "  .amdhsa_float_denorm_mode_32 3",
                      ".end_amdhsa_kernel"]

    def srd(self, sreg, name, sub_off=0, nbytes=None):
        self("s_load_dwordx2 s[%d:%d], s[0:1], %d" % (sreg, sreg + 1, KA[name]))

    def srd_fin(self, sreg, name, sub_off=0, nbytes=None):
        if nbytes is None:
            nbytes = NB[name] - sub_off
        if sub_off:
            self("s_add_u32 s%d, s%d, 0x%x" % (sreg, sreg, sub_off))
            self("s_addc_u32 s%d, s%d, 0" % (sreg + 1, sreg + 1))
        self("s_mov_b32 s%d, 0x%x" % (sreg + 2, nbytes))
        self("s_mov_b32 s%d, 0x20000" % (sreg + 3))

    def render(self):
        out = [HEADER.rstrip("\n")]
        out += self.launches
        out += ['.amdgcn_target "amdgcn-amd-amdhsa--gfx950"', ".text"]
        out += self.text
        out += ['.section .rodata,"a"']
        out += self.desc
        return "\n".join(out) + "\n"
```

```python
import sys
from asmlib import *

MB = 1 << 20
KV, Y, X, XN, H = 0, 8 * MB, 16 * MB, 24 * MB, 32 * MB
a = Asm()
n_empty = int(sys.argv[2]) if len(sys.argv) > 2 else 0


def rnd(v):
    a(f"v_cvt_pk_bf16_f32 v{v}, v{v}, v{v}\nv_lshlrev_b32 v{v}, 16, v{v}")


def guard(n):
    a(f"s_cmp_ge_u32 s2, {n}\ns_cbranch_scc1 L_done")


for i in range(n_empty):
    a.launch("empty_kernel", 256, 256)
a.launch("n1_kernel", S, 640)
a.launch("n2_kernel", S, 640)
a.launch("e1_kernel", S, 64)
a.launch("g1_kernel", S * 3, 576)
a.launch("g2a_kernel", S, 640)
a.launch("e2_kernel", S, 64)
a.launch("g1_kernel", S * 3, 576)
a.launch("g2b_kernel", S, 640)

a.begin("empty_kernel")
a("s_endpgm")
a.end("empty_kernel", 8, 16)

a.begin("n1_kernel")
guard(S)
a.srd(4, "k"); a.srd(8, "v"); a.srd(12, "shift"); a.srd(16, "ws")
a("s_waitcnt lgkmcnt(0)")
a.srd_fin(4, "k"); a.srd_fin(8, "v"); a.srd_fin(12, "shift"); a.srd_fin(16, "ws", KV, S * D * 4)
a("""
s_mul_i32 s3, s2, 1280
v_lshlrev_b32 v1, 1, v0
v_add_u32 v1, s3, v1
v_lshlrev_b32 v2, 3, v0
buffer_load_dwordx2 v[4:5], v2, s[12:15], 0 offen
buffer_load_ushort v6, v1, s[8:11], 0 offen
buffer_load_ushort v10, v1, s[4:7], 0 offen
v_subrev_u32 v3, 1280, v1
buffer_load_ushort v11, v3, s[4:7], 0 offen
v_subrev_u32 v3, 2560, v1
buffer_load_ushort v12, v3, s[4:7], 0 offen
v_subrev_u32 v3, 3840, v1
buffer_load_ushort v13, v3, s[4:7], 0 offen
s_waitcnt vmcnt(0)
v_lshlrev_b32 v6, 16, v6
v_lshlrev_b32 v10, 16, v10
v_lshlrev_b32 v11, 16, v11
v_lshlrev_b32 v12, 16, v12
v_lshlrev_b32 v13, 16, v13
v_lshlrev_b32 v14, 16, v4
v_and_b32 v15, 0xffff0000, v4
v_lshlrev_b32 v16, 16, v5
v_and_b32 v17, 0xffff0000, v5
v_mul_f32 v20, v13, v17
v_fmac_f32 v20, v12, v16
v_fmac_f32 v20, v11, v15
v_fmac_f32 v20, v10, v14
v_mul_f32 v20, v20, v6
""")
rnd(20)
a("""
v_lshlrev_b32 v1, 1, v1
buffer_store_dword v20, v1, s[16:19], 0 offen
s_endpgm
""")
a.end("n1_kernel", 32, 32)

a.begin("n2_kernel")
guard(S)
a.srd(4, "ssmk"); a.srd(8, "ssmd"); a.srd(12, "ws"); a.srd(16, "ws")
a("s_waitcnt lgkmcnt(0)")
a.srd_fin(4, "ssmk"); a.srd_fin(8, "ssmd"); a.srd_fin(12, "ws", KV, S * D * 4); a.srd_fin(16, "ws", Y, S * D * 4)
a("""
s_mul_i32 s3, s2, 2560
v_lshlrev_b32 v1, 2, v0
v_add_u32 v1, s3, v1
v_mov_b32 v30, v1
v_lshlrev_b32 v2, 12, v0
v_lshlrev_b32 v3, 1, v0
buffer_load_ushort v31, v3, s[8:11], 0 offen
buffer_load_dword v32, v1, s[12:15], 0 offen
s_waitcnt vmcnt(0)
v_lshlrev_b32 v31, 16, v31
v_mul_f32 v20, v31, v32
s_mov_b32 s20, 0
L_n2:
buffer_load_dwordx4 v[4:7], v2, s[4:7], 0 offen
""")
for j in range(8):
    a(f"buffer_load_dword v{8+j}, v1, s[12:15], 0 offen\nv_subrev_u32 v1, 2560, v1")
a("s_waitcnt vmcnt(0)")
for j in range(8):
    if j % 2 == 0:
        a(f"v_lshlrev_b32 v21, 16, v{4+j//2}")
    else:
        a(f"v_and_b32 v21, 0xffff0000, v{4+j//2}")
    a(f"v_fmac_f32 v20, v21, v{8+j}")
a("""
v_add_u32 v2, 16, v2
s_add_u32 s20, s20, 8
s_cmp_le_u32 s20, s2
s_cbranch_scc1 L_n2
""")
rnd(20)
a("buffer_store_dword v20, v30, s[16:19], 0 offen\ns_endpgm")
a.end("n2_kernel", 40, 32)


def wave_sum(v, t):
    for m in (1, 2, 4, 8, 16, 32):
        a(f"""v_xor_b32 v{t}, {m}, v0
v_lshlrev_b32 v{t}, 2, v{t}
ds_bpermute_b32 v{t}, v{t}, v{v}
s_waitcnt lgkmcnt(0)
v_add_f32 v{v}, v{v}, v{t}""")


def layernorm(src, dst):
    a("v_mov_b32 v40, 0")
    for j in range(10):
        a(f"v_add_f32 v40, v40, v{src+j}")
    wave_sum(40, 41)
    a("v_mul_f32 v40, 0x3acccccd, v40\nv_mov_b32 v42, 0")
    for j in range(10):
        a(f"v_sub_f32 v43, v{src+j}, v40\nv_fmac_f32 v42, v43, v43")
    wave_sum(42, 41)
    a("v_mul_f32 v42, 0x3acccccd, v42")
    rnd(40); rnd(42)
    a("v_add_f32 v42, 0x3727c5ac, v42")
    rnd(42)
    a("v_sqrt_f32 v42, v42\ns_nop 1")
    rnd(42)
    a("v_rcp_f32 v42, v42\ns_nop 1")
    for j in range(10):
        a(f"v_sub_f32 v{dst+j}, v{src+j}, v40\nv_mul_f32 v{dst+j}, v{dst+j}, v42")


for name in ("e1_kernel", "e2_kernel"):
    a.begin(name)
    guard(S)
    a.srd(4, "q"); a.srd(8, "ws"); a.srd(12, "ws"); a.srd(16, "ws")
    a("s_waitcnt lgkmcnt(0)")
    a.srd_fin(4, "q"); a.srd_fin(8, "ws", Y, S * D * 4); a.srd_fin(12, "ws", X, S * D * 4); a.srd_fin(16, "ws", XN, S * D * 4)
    a("s_mul_i32 s3, s2, 2560\nv_lshlrev_b32 v1, 2, v0\nv_add_u32 v1, s3, v1\nv_lshrrev_b32 v2, 1, v1")
    for j in range(10):
        if name == "e1_kernel":
            a(f"buffer_load_ushort v{10+j}, v2, s[4:7], 0 offen offset:{j*128}")
        else:
            a(f"buffer_load_dword v{10+j}, v1, s[12:15], 0 offen offset:{j*256}")
        a(f"buffer_load_dword v{20+j}, v1, s[8:11], 0 offen offset:{j*256}")
    a("s_waitcnt vmcnt(0)")
    if name == "e1_kernel":
        for j in range(10):
            a(f"v_lshlrev_b32 v{10+j}, 16, v{10+j}")
    layernorm(10, 30)
    for j in range(10):
        a(f"v_fmac_f32 v{10+j}, v{30+j}, v{20+j}")
        rnd(10 + j)
        a(f"buffer_store_dword v{10+j}, v1, s[12:15], 0 offen offset:{j*256}")
    layernorm(10, 30)
    for j in range(10):
        rnd(30 + j)
        a(f"buffer_store_dword v{30+j}, v1, s[16:19], 0 offen offset:{j*256}")
    a("s_endpgm")
    a.end(name, 48, 32)

a.begin("g1_kernel")
guard(S * 3)
a.srd(4, "wg"); a.srd(8, "wu"); a.srd(12, "ws"); a.srd(16, "ws")
a("s_waitcnt lgkmcnt(0)")
a.srd_fin(4, "wg"); a.srd_fin(8, "wu"); a.srd_fin(12, "ws", XN, S * D * 4); a.srd_fin(16, "ws", H, S * F * 4)
a("""
s_and_b32 s20, s2, 2047
s_lshr_b32 s21, s2, 11
s_mul_i32 s21, s21, 576
v_add_u32 v1, s21, v0
v_lshlrev_b32 v2, 1, v1
s_mul_i32 s22, s20, 2560
v_mov_b32 v20, 0
v_mov_b32 v21, 0
s_mov_b32 s23, 0
L_g1:
s_buffer_load_dwordx8 s[24:31], s[12:15], s22
""")
for j in range(8):
    a(f"buffer_load_ushort v{4+j}, v2, s[4:7], 0 offen\nbuffer_load_ushort v{12+j}, v2, s[8:11], 0 offen\nv_add_u32 v2, 3456, v2")
a("s_waitcnt vmcnt(0) lgkmcnt(0)")
for j in range(8):
    a(f"v_lshlrev_b32 v{4+j}, 16, v{4+j}\nv_lshlrev_b32 v{12+j}, 16, v{12+j}\nv_fmac_f32 v20, s{24+j}, v{4+j}\nv_fmac_f32 v21, s{24+j}, v{12+j}")
a("""
s_add_u32 s22, s22, 32
s_add_u32 s23, s23, 8
s_cmp_lt_u32 s23, 640
s_cbranch_scc1 L_g1
v_mul_f32 v4, v20, v20
v_mov_b32 v5, 0xc0135761
v_fmac_f32 v5, 0xbdd2d3e7, v4
v_mul_f32 v5, v5, v20
v_exp_f32 v5, v5
s_nop 1
v_add_f32 v5, 1.0, v5
v_rcp_f32 v5, v5
s_nop 1
v_mul_f32 v20, v20, v21
v_mul_f32 v20, v20, v5
""")
rnd(20)
a("""
s_mul_i32 s22, s20, 6912
v_lshlrev_b32 v1, 2, v1
v_add_u32 v1, s22, v1
buffer_store_dword v20, v1, s[16:19], 0 offen
s_endpgm
""")
a.end("g1_kernel", 32, 40)

for name in ("g2a_kernel", "g2b_kernel"):
    a.begin(name)
    guard(S)
    a.srd(4, "wd"); a.srd(8, "out"); a.srd(12, "ws"); a.srd(16, "ws")
    a("s_waitcnt lgkmcnt(0)")
    a.srd_fin(4, "wd"); a.srd_fin(8, "out"); a.srd_fin(12, "ws", H, S * F * 4); a.srd_fin(16, "ws", X, S * D * 4)
    lab = a.label("g2")
    a(f"""
v_lshlrev_b32 v2, 1, v0
s_mul_i32 s22, s2, 6912
s_mul_i32 s21, s2, 2560
v_lshlrev_b32 v1, 2, v0
v_add_u32 v1, s21, v1
buffer_load_dword v21, v1, s[16:19], 0 offen
v_mov_b32 v20, 0
s_mov_b32 s23, 0
{lab}:
s_buffer_load_dwordx8 s[24:31], s[12:15], s22
""")
    for j in range(8):
        a(f"buffer_load_ushort v{4+j}, v2, s[4:7], 0 offen\nv_add_u32 v2, 1280, v2")
    a("s_waitcnt vmcnt(0) lgkmcnt(0)")
    for j in range(8):
        a(f"v_lshlrev_b32 v{4+j}, 16, v{4+j}\nv_fmac_f32 v20, s{24+j}, v{4+j}")
    a(f"""
s_add_u32 s22, s22, 32
s_add_u32 s23, s23, 8
s_cmp_lt_u32 s23, 1728
s_cbranch_scc1 {lab}
""")
    rnd(20)
    a("v_add_f32 v20, v20, v21")
    rnd(20)
    if name == "g2a_kernel":
        a("buffer_store_dword v20, v1, s[16:19], 0 offen")
    else:
        a("v_lshrrev_b32 v20, 16, v20\nv_lshrrev_b32 v1, 1, v1\nbuffer_store_short v20, v1, s[8:11], 0 offen")
    a("s_endpgm")
    a.end(name, 32, 40)

a("L_done:\ns_endpgm")
open(sys.argv[1], "w").write(a.render())
```

```python
import re

NAME = "interleave_layers__ssm_conv_h3__glu_gated_geglu__prompt"
HEADER = open("cdna_kernels/%s.s.ref" % NAME).read().split("; Override launch")[0]

KA = dict(q=0, k=8, v=16, shift=24, ssmk=32, ssmd=40, bx=48, wg=56, wu=64, wd=72, out=80, dbg=88, ws=96)
S, D, F = 2048, 640, 1728
NB = dict(q=S * D * 2, k=S * D * 2, v=S * D * 2, shift=D * 4 * 2, ssmk=D * S * 2, ssmd=D * 2,
          wg=D * F * 2, wu=D * F * 2, wd=F * D * 2, out=S * D * 2, dbg=256, ws=268435456)


class Asm:
    def __init__(self):
        self.launches = []
        self.text = []
        self.desc = []
        self.uid = 0

    def __call__(self, s):
        for line in s.strip("\n").split("\n"):
            self.text.append("    " + line.strip() if not line.strip().endswith(":") else line.strip())

    def label(self, base):
        self.uid += 1
        return "L_%s_%d" % (base, self.uid)

    def launch(self, kernel, grid, block, lds=0):
        self.launches.append("; @launch kernel=%s grid=(%d,1,1) block=(%d,1,1) lds=%d" % (kernel, grid, block, lds))

    def begin(self, kernel):
        self.text += [".globl %s" % kernel, ".p2align 8", ".type %s,@function" % kernel, "%s:" % kernel]

    def end(self, kernel, vgpr=128, sgpr=96, accum=None):
        if accum is None:
            accum = min(256, (vgpr + 3) // 4 * 4)
        self.desc += [".p2align 6", ".amdhsa_kernel %s" % kernel,
                      "  .amdhsa_next_free_vgpr %d" % vgpr,
                      "  .amdhsa_next_free_sgpr %d" % sgpr,
                      "  .amdhsa_accum_offset %d" % accum,
                      "  .amdhsa_group_segment_fixed_size 0",
                      "  .amdhsa_kernarg_size 104",
                      "  .amdhsa_user_sgpr_count 2",
                      "  .amdhsa_user_sgpr_kernarg_segment_ptr 1",
                      "  .amdhsa_system_sgpr_workgroup_id_x 1",
                      "  .amdhsa_float_denorm_mode_32 3",
                      ".end_amdhsa_kernel"]

    def srd(self, sreg, name, sub_off=0, nbytes=None):
        self("s_load_dwordx2 s[%d:%d], s[0:1], %d" % (sreg, sreg + 1, KA[name]))

    def srd_fin(self, sreg, name, sub_off=0, nbytes=None):
        if nbytes is None:
            nbytes = NB[name] - sub_off
        if sub_off:
            self("s_add_u32 s%d, s%d, 0x%x" % (sreg, sreg, sub_off))
            self("s_addc_u32 s%d, s%d, 0" % (sreg + 1, sreg + 1))
        self("s_mov_b32 s%d, 0x%x" % (sreg + 2, nbytes))
        self("s_mov_b32 s%d, 0x20000" % (sreg + 3))

    def render(self):
        out = [HEADER.rstrip("\n")]
        out += self.launches
        out += ['.amdgcn_target "amdgcn-amd-amdhsa--gfx950"', ".text"]
        out += self.text
        out += ['.section .rodata,"a"']
        out += self.desc
        return "\n".join(out) + "\n"


STAMP_OFF = 200 << 20
STAMP_S0 = 84


def stamp(a, i):
    a("s_memrealtime s[%d:%d]" % (STAMP_S0 + 2 * i, STAMP_S0 + 2 * i + 1))


def stamp_flush(a, kidx, n, vtmp=0, wgreg="s2", stmp=76):
    a("s_waitcnt vmcnt(0) lgkmcnt(0)")
    a("s_load_dwordx2 s[%d:%d], s[0:1], %d" % (stmp, stmp + 1, KA["ws"]))
    a("s_waitcnt lgkmcnt(0)")
    a("s_add_u32 s%d, s%d, 0x%x" % (stmp, stmp, STAMP_OFF + (kidx << 20)))
    a("s_addc_u32 s%d, s%d, 0" % (stmp + 1, stmp + 1))
    a("s_mov_b32 s%d, 0x100000" % (stmp + 2))
    a("s_mov_b32 s%d, 0x20000" % (stmp + 3))
    a("s_mov_b64 exec, -1")
    a("v_and_b32 v%d, 0x3c0, v%d" % (vtmp + 1, vtmp))
    a("s_lshl_b32 s75, %s, 10" % wgreg)
    a("v_add_u32 v%d, s75, v%d" % (vtmp + 1, vtmp + 1))
    a("s_mov_b64 exec, 1")
    for i in range(n):
        a("v_mov_b32 v%d, s%d" % (vtmp + 2, STAMP_S0 + 2 * i))
        a("v_mov_b32 v%d, s%d" % (vtmp + 3, STAMP_S0 + 2 * i + 1))
        a("buffer_store_dwordx2 v[%d:%d], v%d, s[%d:%d], 0 offen offset:%d" % (vtmp + 2, vtmp + 3, vtmp + 1, stmp, stmp + 3, 8 * i))
        a("s_nop 1")
    a("s_mov_b64 exec, -1")


class Cnt:
    def __init__(self, a, name, mx):
        self.a, self.name, self.mx = a, name, mx
        self.issued = 0
        self.done = 0

    def issue(self, text):
        self.a(text)
        self.issued += 1
        return self.issued

    def wait(self, tok):
        if tok is None or tok <= self.done:
            return
        n = self.issued - tok
        self.a("s_waitcnt %s(%d)" % (self.name, min(n, self.mx)))
        self.done = tok if n <= self.mx else max(self.done, self.issued - self.mx)

    def all(self):
        self.wait(self.issued)

    def reset(self):
        self.issued = self.done = 0


def f32(x):
    import struct
    return "0x%08x" % struct.unpack("<I", struct.pack("<f", x))[0]
```

```python
from asmlib import *
from layout import *

C1, UO, WSTR = 4160, 8320, 13312
FRONT_LDS = 4 * 20992


def bf16r(a, v):
    a(f"v_cvt_pk_bf16_f32 v{v}, v{v}, v{v}\nv_lshlrev_b32 v{v}, 16, v{v}")


def finalize_stats(a, vs, vq, t):
    a(f"v_mul_f32 v{vs}, {f32(1/640)}, v{vs}")
    a(f"v_mul_f32 v{t}, v{vs}, v{vs}")
    a(f"v_fma_f32 v{vq}, v{vq}, s34, -v{t}")
    a(f"v_max_f32 v{vq}, 0, v{vq}")
    bf16r(a, vs)
    bf16r(a, vq)
    a(f"v_add_f32 v{vq}, {f32(1e-5)}, v{vq}")
    bf16r(a, vq)
    a(f"v_sqrt_f32 v{vq}, v{vq}\ns_nop 0")
    bf16r(a, vq)
    a(f"v_rcp_f32 v{vq}, v{vq}\ns_nop 0")


def ids(a):
    a("""
v_lshrrev_b32 v1, 6, v0
s_lshr_b32 s21, s2, 3
v_readfirstlane_b32 s20, v1
s_and_b32 s22, s2, 7
v_and_b32 v1, 63, v0
""")


def conv_ids(a):
    a("s_mul_i32 s23, s22, 20\ns_add_u32 s23, s23, s21\ns_and_b32 s24, s23, 15\ns_lshr_b32 s23, s23, 4")


def phase_a(a, vm, st_flags):
    a("""
v_and_b32 v2, 15, v1
v_lshrrev_b32 v3, 4, v1
s_lshl_b32 s25, s24, 7
s_lshl_b32 s26, s20, 5
s_add_u32 s25, s25, s26
v_lshl_add_u32 v3, v3, 3, s25
s_lshl_b32 s26, s23, 6
v_lshl_add_u32 v2, v2, 2, s26
v_mul_u32_u24 v4, 1280, v3
v_lshl_add_u32 v4, v2, 1, v4
v_subrev_u32 v5, 3840, v4
v_lshlrev_b32 v6, 3, v2
s_movk_i32 s27, 5120
""")
    KR, VR, WR = 16, 40, 8
    tw = [vm.issue(f"buffer_load_dwordx4 v[{WR+4*i}:{WR+3+4*i}], v6, s[12:15], 0 offen offset:{16*i}") for i in range(2)]
    tk, tv = [], []
    for i in range(3):
        tk.append(vm.issue(f"buffer_load_dwordx2 v[{KR+2*i}:{KR+1+2*i}], v5, s[4:7], 0 offen offset:{1280*i}"))
    for i in range(8):
        so = "0" if i < 4 else "s27"
        tk.append(vm.issue(f"buffer_load_dwordx2 v[{KR+6+2*i}:{KR+7+2*i}], v4, s[4:7], {so} offen offset:{1280*(i%4)}"))
        tv.append(vm.issue(f"buffer_load_dwordx2 v[{VR+2*i}:{VR+1+2*i}], v4, s[8:11], {so} offen offset:{1280*(i%4)}"))
    a("v_lshlrev_b32 v7, 12, v2\nv_sub_u32 v3, 2040, v3\nv_lshl_add_u32 v7, v3, 1, v7")
    yield
    WU, KU, VU, O = 56, 72, 116, 124
    vm.wait(tw[1])
    for c in range(4):
        for j in range(4):
            src = WR + 2 * c + (j >> 1)
            dst = WU + 4 * j + c
            a(f"v_lshlrev_b32 v{dst}, 16, v{src}" if j % 2 == 0 else f"v_and_b32 v{dst}, 0xffff0000, v{src}")

    def unpack(src, dst):
        for h in range(2):
            a(f"v_lshlrev_b32 v{dst+2*h}, 16, v{src+h}\nv_and_b32 v{dst+2*h+1}, 0xffff0000, v{src+h}")
    vm.wait(tk[2])
    for i in range(3):
        unpack(KR + 2 * i, KU + 4 * i)
    for i in range(8):
        vm.wait(tv[i])
        unpack(KR + 6 + 2 * i, KU + 12 + 4 * i)
        unpack(VR + 2 * i, VU + 4 * (i & 1))
        for pi in range(2):
            o = O + 4 * i + 2 * pi
            kk = lambda r: f"v[{KU+4*r+2*pi}:{KU+4*r+2*pi+1}]"
            ww = lambda j: f"v[{WU+4*j+2*pi}:{WU+4*j+2*pi+1}]"
            a(f"v_pk_mul_f32 v[{o}:{o+1}], {kk(i)}, {ww(3)}")
            for j in (2, 1, 0):
                a(f"v_pk_fma_f32 v[{o}:{o+1}], {kk(i+3-j)}, {ww(j)}, v[{o}:{o+1}]")
            vv = VU + 4 * (i & 1) + 2 * pi
            a(f"v_pk_mul_f32 v[{o}:{o+1}], v[{o}:{o+1}], v[{vv}:{vv+1}]")
    for c in range(4):
        p = 16 + 4 * c
        for d in range(4):
            a(f"v_cvt_pk_bf16_f32 v{p+d}, v{O+4*(7-2*d)+c}, v{O+4*(6-2*d)+c}")
        a(f"s_mov_b32 s27, {4096*c}")
        vm.issue(f"buffer_store_dwordx4 v[{p}:{p+3}], v7, s[16:19], s27 offen {st_flags}")


def conv_h_load(a, vm):
    a("""
s_lshl_b32 s28, s23, 6
s_lshl_b32 s29, s24, 2
s_add_u32 s28, s28, s29
s_add_u32 s28, s28, s20
s_lshl_b32 s29, s28, 12
v_lshlrev_b32 v158, 4, v1
s_lshl_b32 s30, s28, 1
v_mov_b32 v159, s30
""")
    t = []
    for i in range(4):
        vm.issue(f"buffer_load_dwordx4 v[{160+4*i}:{163+4*i}], v158, s[40:43], s29 offen offset:{1024*i}")
        t.append(vm.issue(f"buffer_load_dword v{176+i}, v158, s[40:43], s29 offen offset:{1024*i+16}"))
    t.append(vm.issue("buffer_load_ushort v180, v159, s[44:47], 0 offen"))
    return t


def conv_h_stage(a, vm, lg, t):
    a(f"s_mul_i32 s31, s20, {WSTR}\nv_add_u32 v157, s31, v158")
    for r in range(188, 192):
        a(f"v_mov_b32 v{r}, 0")
    a("s_mov_b64 exec, 0x3fffffff")
    lg.issue(f"ds_write_b128 v157, v[188:191] offset:{UO+4096}")
    a("s_mov_b64 exec, 3")
    lg.issue("ds_write_b128 v157, v[188:191]")
    a("s_mov_b64 exec, -1")
    for i in range(4):
        vm.wait(t[i])
        b = 160 + 4 * i
        lg.issue(f"ds_write_b128 v157, v[{b}:{b+3}] offset:{32+1024*i}")
        if i == 0:
            a("v_readfirstlane_b32 s32, v160")
        o = 192 + 4 * (i & 1)
        for d in range(4):
            hi = b + d + 1 if d < 3 else 176 + i
            a(f"v_alignbit_b32 v{o+d}, v{hi}, v{b+d}, 16")
        lg.issue(f"ds_write_b128 v157, v[{o}:{o+3}] offset:{C1+32+1024*i}")
    a("""
s_lshl_b32 s32, s32, 16
v_cmp_eq_u32 vcc, 1, v1
v_mov_b32 v181, s32
s_nop 0
v_cndmask_b32 v191, 0, v181, vcc
s_mov_b64 exec, 3
""")
    lg.issue(f"ds_write_b128 v157, v[188:191] offset:{C1}")
    a("s_mov_b64 exec, -1")
    vm.wait(t[4])
    a("""
v_and_b32 v181, 15, v1
v_lshrrev_b32 v182, 4, v1
v_lshl_add_u32 v183, v182, 3, v181
v_sub_u32 v183, 15, v183
v_lshlrev_b32 v156, 16, v180
""")
    for r in range(4):
        a(f"""v_cmp_eq_u32 vcc, {2*r}, v183
s_nop 1
v_cndmask_b32 v{184+r}, 0, v180, vcc
v_cmp_eq_u32 vcc, {2*r+1}, v183
s_nop 1
v_cndmask_b32 v{184+r}, v{184+r}, v156, vcc""")
    a(f"""
v_lshl_add_u32 v150, v182, 3, v181
v_add_u32 v150, 1, v150
v_and_b32 v151, 1, v150
v_lshrrev_b32 v150, 1, v150
v_lshlrev_b32 v150, 2, v150
v_mul_u32_u24 v151, {C1}, v151
v_add3_u32 v150, v150, v151, s31
v_add_u32 v151, 1024, v150
v_add_u32 v152, 2048, v150
v_add_u32 v153, 3072, v150
v_lshlrev_b32 v154, 4, v182
v_lshlrev_b32 v156, 5, v181
v_sub_u32 v154, v154, v156
s_add_u32 s32, s31, {UO+480}
v_add_u32 v154, s32, v154
v_lshl_add_u32 v155, v182, 3, v156
""")


def conv_main(a, vm, lg, ld_flags, st_flags, stamps=False):
    t = [vm.issue(f"buffer_load_dwordx4 v[{160+4*i}:{163+4*i}], v158, s[16:19], s29 offen offset:{1024*i} {ld_flags}") for i in range(4)]
    for i in range(4):
        vm.wait(t[i])
        lg.issue(f"ds_write_b128 v157, v[{160+4*i}:{163+4*i}] offset:{UO+1024*i}")
    lg.all()
    BUF = (0, 64)
    ACC = 192

    def reads(buf):
        out = []
        for x in range(8):
            b = BUF[buf] + 32 + 4 * x
            out.append(f"ds_read_b128 v[{b}:{b+3}], v154 offset:{512*(7-x)}")
            p = BUF[buf] + 4 * x
            o = 128 * (x & 1)
            out.append(f"ds_read2_b32 v[{p}:{p+1}], v{150+(x>>1)} offset0:{o} offset1:{o+1}")
            out.append(f"ds_read2_b32 v[{p+2}:{p+3}], v{150+(x>>1)} offset0:{o+2} offset1:{o+3}")
        return out

    def bump():
        return [f"v_add_u32 v{150+i}, 64, v{150+i}" for i in range(5)]

    for r in reads(0):
        a(r)
    for r in bump():
        a(r)
    a("s_waitcnt lgkmcnt(0)")
    for j in range(8):
        b = BUF[0] + 32 + 4 * j
        a(f"v_mfma_f32_16x16x32_bf16 v[{ACC+4*j}:{ACC+3+4*j}], v[184:187], v[{b}:{b+3}], 0")
    if stamps: stamp(a, 4)
    a("s_mov_b32 s33, 0")
    lp = a.label("conv")
    a(lp + ":")
    for buf in range(2):
        fill = reads(1 - buf) + bump()
        ms = [(p, j) for p in range(8) for j in range(p, 8)]
        for n, (p, j) in enumerate(ms):
            A = BUF[buf] + 4 * p
            B = BUF[buf] + 32 + 4 * (j - p)
            a(f"v_mfma_f32_16x16x32_bf16 v[{ACC+4*j}:{ACC+3+4*j}], v[{A}:{A+3}], v[{B}:{B+3}], v[{ACC+4*j}:{ACC+3+4*j}]")
            if fill:
                a(fill.pop(0))
        if buf == 1:
            a("s_add_u32 s33, s33, 1\ns_cmp_lt_u32 s33, 4")
        a("s_waitcnt lgkmcnt(0)")
    a(f"s_cbranch_scc1 {lp}")
    if stamps: stamp(a, 5)
    a("s_nop 4")
    for j in range(8):
        c = ACC + 4 * j
        a(f"v_cvt_pk_bf16_f32 v{2*j}, v{c}, v{c+1}\nv_cvt_pk_bf16_f32 v{2*j+1}, v{c+2}, v{c+3}")
        vm.issue(f"buffer_store_dwordx2 v[{2*j}:{2*j+1}], v155, s[36:39], s29 offen offset:{512*j} {st_flags}")
    lg.reset()


def qstats_job(a, vm, sjob):
    a(f"""
s_lshl_b32 s35, {sjob}, 2
v_lshrrev_b32 v2, 4, v1
v_add_u32 v2, s35, v2
v_and_b32 v3, 15, v1
v_mul_u32_u24 v4, 1280, v2
v_lshl_add_u32 v4, v3, 4, v4
v_lshlrev_b32 v5, 3, v2
""")
    t = [vm.issue(f"buffer_load_dwordx4 v[{8+4*n}:{11+4*n}], v4, s[48:51], 0 offen offset:{256*n}") for n in range(5)]
    a("v_mov_b32 v6, 0\nv_mov_b32 v7, 0\nv_mov_b32 v28, 0x3f803f80")
    for n in range(5):
        vm.wait(t[n])
        for d in range(4):
            r = 8 + 4 * n + d
            a(f"v_dot2_f32_bf16 v6, v{r}, v28, v6\nv_dot2_f32_bf16 v7, v{r}, v{r}, v7")
    a("s_nop 2")
    for sh in (8, 4, 2, 1):
        a(f"v_add_f32_dpp v6, v6, v6 row_ror:{sh} row_mask:0xf bank_mask:0xf\nv_add_f32_dpp v7, v7, v7 row_ror:{sh} row_mask:0xf bank_mask:0xf\ns_nop 0")
    finalize_stats(a, 6, 7, 29)
    a("v_cmp_eq_u32 vcc, 0, v3\ns_and_saveexec_b64 s[56:57], vcc")
    vm.issue("buffer_store_dwordx2 v[6:7], v5, s[52:55], 0 offen sc1")
    a("s_mov_b64 exec, s[56:57]")


def w1_job(a, vm, lg):
    a("""
v_lshrrev_b32 v2, 3, v1
v_and_b32 v3, 7, v1
s_mul_i32 s28, s20, 160
v_add_u32 v4, s28, v2
v_mul_u32_u24 v4, 3456, v4
v_lshl_add_u32 v4, v3, 4, v4
s_lshl_b32 s28, s27, 7
""")
    t = []
    for i in range(20):
        t.append(vm.issue(f"buffer_load_dwordx4 v[{32+4*i}:{35+4*i}], v4, s[4:7], s28 offen"))
        a(f"s_add_u32 s28, s28, {8*3456}")
    a(f"""
s_mul_i32 s29, s20, 20480
v_bfe_u32 v5, v2, 1, 1
v_lshlrev_b32 v5, 2, v5
v_xor_b32 v5, v5, v3
v_lshlrev_b32 v5, 4, v5
v_lshl_add_u32 v5, v2, 7, v5
v_add_u32 v5, s29, v5
v_bfe_u32 v6, v1, 2, 2
v_lshrrev_b32 v7, 5, v1
v_lshl_add_u32 v7, v7, 3, v6
v_lshlrev_b32 v7, 7, v7
v_bfe_u32 v8, v1, 4, 1
v_bfe_u32 v9, v1, 1, 1
v_lshl_add_u32 v9, v8, 1, v9
v_lshrrev_b32 v6, 1, v6
v_lshlrev_b32 v6, 2, v6
v_xor_b32 v9, v9, v6
v_lshl_add_u32 v7, v9, 4, v7
v_and_b32 v6, 1, v1
v_lshl_add_u32 v7, v6, 3, v7
v_add_u32 v7, s29, v7
v_xor_b32 v6, 64, v7
v_mul_u32_u24 v8, 40960, v8
v_lshrrev_b32 v9, 5, v1
v_lshl_add_u32 v8, v9, 9, v8
v_and_b32 v9, 15, v1
v_lshl_add_u32 v8, v9, 4, v8
s_lshl_b32 s30, s26, 8
v_add_u32 v8, s30, v8
s_mul_i32 s30, s27, {4*40960}
s_mul_i32 s31, s20, 10240
s_add_u32 s30, s30, s31
s_add_u32 s31, s30, {2*40960}
v_mov_b32 v12, 0x3f803f80
v_mov_b32 v13, 0x3f803f80
v_mov_b32 v14, 0x3f803f80
v_mov_b32 v15, 0x3f803f80
""")
    for ks in range(10):
        for h in range(2):
            i = 2 * ks + h
            vm.wait(t[i])
            lg.issue(f"ds_write_b128 v5, v[{32+4*i}:{35+4*i}] offset:{1024*i}")
        lg.all()
        tk = []
        for pr in range(2):
            b = 16 + 8 * (ks & 1) + 4 * pr
            lg.issue(f"ds_read_b64_tr_b16 v[{b}:{b+1}], v{7-pr} offset:{2048*ks}")
            tk.append(lg.issue(f"ds_read_b64_tr_b16 v[{b+2}:{b+3}], v{7-pr} offset:{2048*ks+512}"))
        for pr in range(2):
            b = 16 + 8 * (ks & 1) + 4 * pr
            lg.wait(tk[pr])
            c = "0" if ks == 0 else f"v[{112+16*pr}:{127+16*pr}]"
            a(f"v_mfma_f32_32x32x16_bf16 v[{112+16*pr}:{127+16*pr}], v[12:15], v[{b}:{b+3}], {c}")
            vm.issue(f"buffer_store_dwordx4 v[{b}:{b+3}], v8, s[8:11], s{30+pr} offen sc1")
            a(f"s_add_u32 s{30+pr}, s{30+pr}, 1024")
    a(f"""
s_nop 7
s_barrier
v_and_b32 v2, 31, v1
v_lshlrev_b32 v2, 2, v2
s_lshl_b32 s28, s20, 8
v_add_u32 v3, s28, v2
s_nop 1
""")
    lg.issue("ds_write_b32 v3, v112")
    lg.issue("ds_write_b32 v3, v128 offset:128")
    lg.all()
    a("s_barrier\nv_and_b32 v2, 15, v1\nv_lshlrev_b32 v2, 2, v2\ns_lshl_b32 s28, s20, 6\nv_add_u32 v2, s28, v2")
    for i in range(4):
        lg.issue(f"ds_read_b32 v{16+i}, v2 offset:{256*i}")
    lg.all()
    a("""
v_add_f32 v16, v16, v17
v_add_f32 v18, v18, v19
v_add_f32 v16, v16, v18
v_cvt_pk_bf16_f32 v17, v16, v16
v_lshlrev_b32 v18, 16, v17
v_sub_f32 v16, v16, v18
v_cvt_pk_bf16_f32 v18, v16, v16
v_lshlrev_b32 v19, 16, v18
v_sub_f32 v16, v16, v19
v_cvt_pk_bf16_f32 v16, v16, v16
v_and_b32 v17, 0xffff, v17
v_or_b32 v20, v17, v19
v_and_b32 v21, 0xffff, v16
v_mov_b32 v22, 0
v_mov_b32 v23, 0
v_cmp_gt_u32 vcc, 16, v1
v_and_b32 v2, 15, v1
v_lshlrev_b32 v2, 4, v2
v_cndmask_b32 v20, 0, v20, vcc
v_cndmask_b32 v21, 0, v21, vcc
v_bfe_u32 v3, v1, 4, 1
v_lshl_add_u32 v2, v3, 9, v2
s_lshl_b32 s28, s27, 2
s_add_u32 s28, s28, s20
s_lshl_b32 s28, s28, 10
s_lshl_b32 s29, s26, 8
s_add_u32 s28, s28, s29
s_mov_b64 exec, 0xffffffff
""")
    vm.issue("buffer_store_dwordx4 v[20:23], v2, s[12:15], s28 offen sc1")
    a("s_mov_b64 exec, -1")


def w2_job(a, vm, lg):
    a("s_mul_i32 s28, s25, 20480\nv_lshlrev_b32 v4, 4, v1")
    t = []
    for i in range(20):
        t.append(vm.issue(f"buffer_load_dwordx4 v[{32+4*i}:{35+4*i}], v4, s[4:7], s28 offen offset:{1024*(i%4)}"))
        if i % 4 == 3:
            a("s_add_u32 s28, s28, 4096")
    l1, l2, l3 = a.label("w2"), a.label("w2"), a.label("w2")
    a(f"""
s_cmp_lt_u32 s25, 84
s_cbranch_scc0 {l1}
s_mul_i32 s26, s25, 9363
s_lshr_b32 s26, s26, 16
s_mul_i32 s27, s26, 7
s_sub_u32 s27, s25, s27
s_mul_i32 s30, s26, 3
s_branch {l2}
{l1}:
s_sub_u32 s27, s25, 84
s_mul_i32 s26, s27, 10923
s_lshr_b32 s26, s26, 16
s_mul_i32 s30, s26, 6
s_sub_u32 s27, s27, s30
s_lshl_b32 s30, s26, 1
s_add_u32 s30, s30, 36
s_add_u32 s26, s26, 12
{l2}:
s_add_u32 s30, s30, 60
s_add_u32 s30, s30, s27
s_lshl_b32 s31, s26, 2
s_add_u32 s31, s31, s27
s_cmp_lt_u32 s27, 4
s_cselect_b32 s30, s31, s30
s_lshr_b32 s31, s30, 1
s_mul_i32 s31, s31, 5120
s_and_b32 s30, s30, 1
s_lshl_b32 s30, s30, 9
s_add_u32 s30, s30, s31
s_mul_i32 s29, s20, 20992
v_bfe_u32 v6, v1, 2, 2
v_bfe_u32 v7, v1, 4, 1
v_lshl_add_u32 v6, v7, 2, v6
v_mul_u32_u24 v6, 1312, v6
v_lshrrev_b32 v8, 5, v1
v_lshl_add_u32 v6, v8, 5, v6
v_and_b32 v9, 3, v1
v_lshl_add_u32 v6, v9, 3, v6
v_add_u32 v6, s29, v6
v_and_b32 v9, 15, v1
v_lshlrev_b32 v9, 4, v9
v_lshl_add_u32 v9, v7, 8, v9
v_lshl_add_u32 v10, v8, 10, v9
v_mul_u32_u24 v8, {276480-4096}, v8
v_add_u32 v11, v8, v9
""")
    for i in range(20):
        a(f"v_add_u32 v2, {64*i}, v1\nv_mul_u32_u24 v3, 52429, v2\nv_lshrrev_b32 v3, 22, v3\nv_lshlrev_b32 v2, 4, v2\nv_lshl_add_u32 v2, v3, 5, v2\nv_add_u32 v2, s29, v2")
        vm.wait(t[i])
        lg.issue(f"ds_write_b128 v2, v[{32+4*i}:{35+4*i}]")
    lg.all()
    tk = []
    for q in range(20):
        b = 32 + 4 * q
        lg.issue(f"ds_read_b64_tr_b16 v[{b}:{b+1}], v6 offset:{64*q}")
        tk.append(lg.issue(f"ds_read_b64_tr_b16 v[{b+2}:{b+3}], v6 offset:{64*q+8*1312}"))
        if q >= 4:
            w2_store(a, vm, lg, tk, q - 4)
    for q in range(16, 20):
        w2_store(a, vm, lg, tk, q)


def w2_store(a, vm, lg, tk, q):
    b = 32 + 4 * q
    dt = 2 * q
    off = (dt // 5) * 276480 + (dt % 5) * 1024
    a(f"s_add_u32 s31, s30, {off}")
    lg.wait(tk[q])
    vm.issue(f"buffer_store_dwordx4 v[{b}:{b+3}], v{11 if (dt + 1) % 5 == 0 else 10}, s[8:11], s31 offen sc1")


def side_jobs(a, code_lo, code_bytes):
    vm, lg = Cnt(a, "vmcnt", 63), Cnt(a, "lgkmcnt", 15)
    lw2, lmisc, lq = a.label("w2job"), a.label("misc"), a.label("qs")
    a.srd(48, "q"); a.srd(52, "ws"); a.srd(8, "ws"); a.srd(12, "ws")
    a(f"s_mov_b32 s34, {f32(1/640)}\ns_sub_u32 s25, s21, 20\ns_lshl_b32 s25, s25, 3\ns_add_u32 s25, s25, s22\ns_mov_b32 s58, s25")
    a(f"s_cmp_ge_u32 s25, 54\ns_cbranch_scc1 {lw2}")
    a(f"s_cmp_ge_u32 s25, 27\ns_cselect_b32 s26, 1, 0\ns_cselect_b32 s27, 27, 0\ns_sub_u32 s27, s25, s27")
    a(f"s_lshl_b32 s28, s26, 3\ns_add_u32 s28, s28, {KA['wg']}\ns_load_dwordx2 s[4:5], s[0:1], s28\ns_waitcnt lgkmcnt(0)")
    a.srd_fin(4, "wg"); a.srd_fin(8, "ws", W1P, 108 * 40960); a.srd_fin(12, "ws", W1X, 108 * 1024)
    a.srd_fin(48, "q"); a.srd_fin(52, "ws", QST, S * 8)
    w1_job(a, vm, lg)
    a(f"s_branch {lq}")
    a(f"{lw2}:\ns_cmp_ge_u32 s25, 81\ns_cbranch_scc1 {lmisc}")
    vm.reset(); lg.reset()
    a.srd(4, "wd")
    a("s_sub_u32 s25, s25, 54\ns_lshl_b32 s25, s25, 2\ns_add_u32 s25, s25, s20\ns_waitcnt lgkmcnt(0)")
    a.srd_fin(4, "wd"); a.srd_fin(8, "ws", W2P, 8 * 276480)
    a.srd_fin(48, "q"); a.srd_fin(52, "ws", QST, S * 8)
    w2_job(a, vm, lg)
    a(f"{lq}:\ns_lshl_b32 s58, s58, 2\ns_add_u32 s58, s58, s20\ns_cmp_ge_u32 s58, 272\ns_cbranch_scc1 L_front_end")
    vm.reset()
    qstats_job(a, vm, "s58")
    a("s_branch L_front_end")
    a(f"{lmisc}:\ns_waitcnt lgkmcnt(0)")
    a.srd_fin(8, "ws", FLAGS[0], LSTEP + FLAG_BYTES); a.srd_fin(12, "ws", STX, S * 64)
    a.srd_fin(48, "q"); a.srd_fin(52, "ws", QST, S * 8)
    vm.reset()
    lnm = a.label("nomisc")
    a(f"s_cmp_lt_u32 s25, 88\ns_cbranch_scc1 {lnm}")
    a(f"s_sub_u32 s26, s25, 88\ns_and_b32 s27, s26, 3\ns_lshl_b32 s27, s27, 12\ns_lshr_b32 s28, s26, 2\ns_mul_i32 s28, s28, {LSTEP}\ns_add_u32 s27, s27, s28\nv_lshlrev_b32 v2, 4, v0")
    for r in range(4):
        a(f"v_mov_b32 v{8+r}, 0\nv_mov_b32 v{12+r}, -1")
    vm.issue("buffer_store_dwordx4 v[8:11], v2, s[8:11], s27 offen sc1")
    a("s_lshl_b32 s27, s26, 14")
    for i in range(4):
        vm.issue("buffer_store_dwordx4 v[12:15], v2, s[12:15], s27 offen sc1")
        a("s_add_u32 s27, s27, 4096")
    if code_bytes:
        lpc = a.label("pc")
        a(f"s_getpc_b64 s[4:5]\n{lpc}:\ns_add_u32 s4, s4, {code_lo}-{lpc}\ns_addc_u32 s5, s5, 0\nv_lshlrev_b32 v3, 7, v0")
        for i in range(2):
            a(f"v_cmp_gt_u32 vcc, {code_bytes}, v3\ns_and_saveexec_b64 s[56:57], vcc\ns_cbranch_execz {lpc}_{i}")
            vm.issue("global_load_dword v16, v3, s[4:5]")
            a(f"{lpc}_{i}:\ns_mov_b64 exec, s[56:57]\nv_add_u32 v3, 32768, v3")
    a(f"{lnm}:\ns_sub_u32 s58, s25, 81\ns_lshl_b32 s58, s58, 2\ns_add_u32 s58, s58, s20\ns_lshl_b32 s58, s58, 2\ns_add_u32 s58, s58, 272\ns_add_u32 s59, s58, 4")
    lql = a.label("qloop")
    a(lql + ":")
    vm.reset()
    qstats_job(a, vm, "s58")
    a(f"s_add_u32 s58, s58, 1\ns_cmp_lt_u32 s58, s59\ns_cbranch_scc1 {lql}")
    a("s_branch L_front_end")


def gen_front_split(a, stamps=False, code_lo=None, code_bytes=0):
    a.launch("ka_kernel", 160, 256, 0)
    a.launch("kb_kernel", 256, 256, FRONT_LDS)
    vm, lg = Cnt(a, "vmcnt", 63), Cnt(a, "lgkmcnt", 15)
    a.begin("ka_kernel")
    a("s_cmp_ge_u32 s2, 160\ns_cbranch_scc1 L_ka_exit")
    if stamps: stamp(a, 0)
    a.srd(4, "k"); a.srd(8, "v"); a.srd(12, "shift"); a.srd(16, "ws")
    ids(a); conv_ids(a)
    a("s_waitcnt lgkmcnt(0)")
    a.srd_fin(4, "k"); a.srd_fin(8, "v"); a.srd_fin(12, "shift"); a.srd_fin(16, "ws", KVT, S * D * 2)
    for _ in phase_a(a, vm, "sc1"):
        pass
    if stamps:
        stamp(a, 1); a("s_waitcnt vmcnt(0)"); stamp(a, 2); stamp_flush(a, 0, 3)
    a("L_ka_exit:\ns_endpgm")
    a.end("ka_kernel", 160, 102)

    vm.reset(); lg.reset()
    a.begin("kb_kernel")
    a("s_cmp_ge_u32 s2, 256\ns_cbranch_scc1 L_kb_exit")
    if stamps: stamp(a, 0)
    ids(a)
    a("v_mov_b32 v255, v0\ns_cmp_ge_u32 s21, 20\ns_cbranch_scc1 L_side")
    a.srd(40, "ssmk"); a.srd(44, "ssmd"); a.srd(16, "ws"); a.srd(36, "ws")
    conv_ids(a)
    a("s_waitcnt lgkmcnt(0)")
    a.srd_fin(40, "ssmk"); a.srd_fin(44, "ssmd"); a.srd_fin(16, "ws", KVT, S * D * 2); a.srd_fin(36, "ws", YT, S * D * 2)
    t = conv_h_load(a, vm)
    conv_h_stage(a, vm, lg, t)
    if stamps: stamp(a, 1)
    conv_main(a, vm, lg, "", "sc1", stamps)
    a("s_branch L_front_end\nL_side:")
    if stamps: stamp(a, 1)
    side_jobs(a, code_lo, code_bytes)
    a("L_front_end:")
    if stamps:
        stamp(a, 2); a("s_waitcnt vmcnt(0)"); stamp(a, 3); a("v_mov_b32 v0, v255"); stamp_flush(a, 1, 6)
    a("L_kb_exit:\ns_endpgm")
    a.end("kb_kernel", 256, 102)


if __name__ == "__main__":
    import sys, hazards
    a = Asm()
    gen_front_split(a, stamps=True)
    txt = a.render()
    open("front.s", "w").write(txt)
    for e in hazards.check(txt):
        print("HAZARD line %d -> %d need %d have %d: %s => %s" % e)
```

```python
import re, sys

REG = re.compile(r"\b([vas])\[(\d+):(\d+)\]|\b([vas])(\d+)\b|\b(vcc|exec|m0)\b")
TRANS = ("v_exp_f32", "v_log_f32", "v_rcp_f32", "v_rsq_f32", "v_sqrt_f32", "v_sin_f32", "v_cos_f32")


def regs(op):
    out = set()
    for m in REG.finditer(op):
        if m.group(1):
            out |= {(m.group(1), i) for i in range(int(m.group(2)), int(m.group(3)) + 1)}
        elif m.group(4):
            out.add((m.group(4), int(m.group(5))))
        else:
            out.add((m.group(6), 0))
    return out


class I:
    def __init__(self, text, line):
        self.text, self.line = text, line
        t = text.split(";")[0].strip()
        p = t.split(None, 1)
        self.op = p[0]
        ops = [x.strip() for x in re.split(r",(?![^\[]*\])", p[1])] if len(p) > 1 else []
        self.ops = ops
        o = self.op
        self.mfma = o.startswith("v_mfma")
        self.valu = o.startswith("v_") and not self.mfma
        self.salu = o.startswith("s_")
        self.vmem = o.startswith(("buffer_", "global_"))
        self.ds = o.startswith("ds_")
        self.trans = o.replace("_e32", "").replace("_e64", "") in TRANS
        self.dpp = "dpp" in o or "row_" in t or "wave_sh" in t or "quad_perm" in t
        self.perm = o.startswith("v_permlane")
        self.dot = o.startswith("v_dot")
        self.w, self.r = set(), set()
        self.srcc = set()
        self.stdata = set()
        self.states = 1
        if o == "s_nop":
            self.states = int(ops[0], 0) + 1
        if self.mfma:
            self.w = regs(ops[0]); self.ab = regs(ops[1]) | regs(ops[2]); self.srcc = regs(ops[3]); self.r = self.ab | self.srcc
            self.passes = 8 if "32x32x16" in o else 4
        elif self.valu:
            if o.startswith("v_cmp"):
                self.w = regs(ops[0]); self.r = set().union(*[regs(x) for x in ops[1:]])
            elif self.perm:
                self.w = regs(ops[0]) | regs(ops[1]); self.r = set(self.w)
            else:
                self.w = regs(ops[0]); self.r = set().union(*[regs(x) for x in ops[1:]]) if len(ops) > 1 else set()
                if o.startswith(("v_fmac", "v_dot2c", "v_writelane")) or self.dpp:
                    self.r |= self.w
                if "_co_" in o:
                    self.w |= regs(ops[1])
        elif self.vmem:
            lds = " lds" in t
            if "_load" in o and not lds:
                self.w = regs(ops[0]); self.r = set().union(*[regs(x) for x in ops[1:]])
            elif lds:
                self.r = set().union(*[regs(x) for x in ops]) | {("m0", 0)}
                self.lds = True
            elif o.startswith("buffer_"):
                self.r = set().union(*[regs(x) for x in ops])
                if "x3" in o or "x4" in o:
                    self.stdata = regs(ops[0])
            else:
                self.r = set().union(*[regs(x) for x in ops])
                if "x3" in o or "x4" in o:
                    self.stdata = regs(ops[1])
        elif self.ds:
            if "read" in o or "permute" in o or "swizzle" in o:
                self.w = regs(ops[0]); self.r = set().union(*[regs(x) for x in ops[1:]])
            else:
                self.r = set().union(*[regs(x) for x in ops])
        elif self.salu:
            if o.startswith(("s_cmp", "s_cbranch", "s_branch", "s_waitcnt", "s_barrier", "s_nop", "s_endpgm", "s_sleep", "s_setprio", "s_bitcmp")):
                self.r = set().union(*[regs(x) for x in ops]) if ops else set()
            else:
                self.w = regs(ops[0]); self.r = set().union(*[regs(x) for x in ops[1:]]) if len(ops) > 1 else set()
                if "saveexec" in o:
                    self.w.add(("exec", 0))


def need(p, c):
    n = 0
    vec = lambda s: {x for x in s if x[0] in "va"}
    sg = lambda s: {x for x in s if x[0] in ("s", "vcc")}
    if p.mfma:
        d = p.w
        k = {4: 0, 8: 1}[p.passes]
        if c.mfma:
            if c.ab & d:
                n = max(n, (8, 12)[k])
            if c.srcc & d and not (c.srcc == d and c.passes == p.passes):
                n = max(n, (6, 10)[k])
            if c.w & d and not (c.srcc == d):
                n = max(n, (6, 10)[k])
        elif (c.valu and (c.r | c.w) & d) or ((c.vmem or c.ds) and (c.r | c.w) & d):
            n = max(n, (8, 12)[k])
        if c.valu and c.w & p.srcc:
            n = max(n, (3, 7)[k])
    if p.valu:
        if c.mfma and c.r & vec(p.w):
            n = max(n, 2)
        if p.trans and c.valu and not c.trans and c.r & p.w:
            n = max(n, 1)
        if c.valu and (c.dpp or c.perm) and c.r & vec(p.w):
            n = max(n, 2)
        if c.op.startswith(("v_readlane", "v_readfirstlane")) and c.r & vec(p.w):
            n = max(n, 1)
        if c.vmem and c.r & sg(p.w):
            n = max(n, 5)
        if c.valu and c.r & sg(p.w):
            n = max(n, 2)
        if p.dot and c.valu and (c.r | c.w) & p.w and not (c.op == p.op and not (set().union(*[regs(x) for x in c.ops[1:3]]) & p.w)):
            n = max(n, 3)
        if ("exec", 0) in p.w and (c.mfma or c.dpp or c.perm):
            n = max(n, 5)
    if p.stdata and (c.valu or c.mfma) and c.w & p.stdata:
        n = max(n, 2)
    if p.stdata and (c.vmem or c.ds) and c.w & p.stdata:
        n = max(n, 1)
    if p.salu and ("m0", 0) in p.w and getattr(c, "lds", False):
        n = max(n, 1)
    return n


def scan(seq, errs):
    for j, c in enumerate(seq):
        dist = 0
        for i in range(j - 1, max(-1, j - 24), -1):
            p = seq[i]
            n = need(p, c)
            if n > dist:
                errs.add((p.line, c.line, n, dist, p.text.strip(), c.text.strip()))
            dist += p.states
            if dist >= 20:
                break


def check(text):
    ins, labels = [], {}
    for ln, raw in enumerate(text.split("\n"), 1):
        t = raw.split(";")[0].strip()
        if not t or t.startswith("."):
            continue
        if t.endswith(":"):
            labels[t[:-1]] = len(ins)
            continue
        ins.append(I(raw, ln))
    errs = set()
    seg = []
    for x in ins:
        seg.append(x)
        if x.op in ("s_endpgm", "s_branch"):
            scan(seg, errs); seg = []
    scan(seg, errs)
    for j, x in enumerate(ins):
        if x.op.startswith(("s_cbranch", "s_branch")) and x.ops[0] in labels:
            t = labels[x.ops[0]]
            scan(ins[max(0, j - 24):j + 1] + ins[t:t + 24], errs)
    return sorted(errs)


if __name__ == "__main__":
    e = check(open(sys.argv[1]).read())
    for x in e:
        print("line %d -> %d need %d have %d: %s  =>  %s" % x)
    print(len(e), "hazards")
```

```python
MB = 1 << 20
S, D, F = 2048, 640, 1728
KVT = 0
YT = 4 * MB
W1P = 8 * MB
W1X = 13 * MB
W2P = 14 * MB
QST = 17 * MB
STX = 18 * MB
LBASE, LSTEP = 32 * MB, 16 * MB
XF_O = 0
ST2_O = 3 * MB
FLAGS_O = 3 * MB + MB // 2
HF_O = 4 * MB
XF = (LBASE + XF_O, LBASE + LSTEP + XF_O)
ST2 = (LBASE + ST2_O, LBASE + LSTEP + ST2_O)
HF = (LBASE + HF_O, LBASE + LSTEP + HF_O)
FLAGS = (LBASE + FLAGS_O, LBASE + LSTEP + FLAGS_O)
FLAG_BYTES = 16 * 1024


def tile_owner(T):
    return (T // 7, T % 7) if T < 84 else (12 + (T - 84) // 6, (T - 84) % 6)


def tile_start(j):
    return 7 * j if j < 12 else 84 + 6 * (j - 12)


def tile_kslot(T):
    j, t = tile_owner(T)
    if t < 4:
        return 2 * j + (t >> 1), t & 1
    lam = (3 * j if j < 12 else 36 + 2 * (j - 12)) + t - 4
    return 32 + (lam >> 1), lam & 1
```

```python
import math
from asmlib import *
from layout import *
from gen_front import bf16r

WS, LS, OUT, QS = 4, 8, 12, 16
sW, sRB, sJH, sCB = 20, 21, 22, 23
sT = 24
sCH = 32
sTB = 42
sHS = 49
sK = 56
sHB, sWB, sXS, sXA, sFL, sM0, sINV, sEX, sEX6, sSP = 70, 71, 72, 73, 74, 75, 76, 77, 78, 79
sH, sWd = 80, 81
vL, vL16, vT16, vRD, vHST, vHL, vL16B, vXST, vST, vSTX, vG1S, vOUT, vONE, vPOLL = 1, 2, 3, 4, 7, 8, 12, 13, 14, 15, 16, 17, 18, 19
vY, vXR, vEXT, vC0, vC1, vR, vTMP = 20, 30, 40, 44, 45, 46, 47
vWF, vET, vACC = 48, 72, 92
vG2 = 72
RING, NSLOT = 8192, 38
DUMMY = 0x08000000
KF_LDS = 163840
SPIN = 20000
P = dict(fe_poll=258, fe_chk=270, fe_pub=260, fl_pub=40, fl_poll=70, fl_chk=90, look=4, npre=8, out_flags="", x_ahead=8)


def R(kind, b):
    return f"{kind}[{b}:{b+3}]"


class Sched:
    def __init__(self):
        self.items = []

    def add(self, pos, fn):
        self.items.append((pos, len(self.items), fn))

    def spread(self, lo, hi, fns):
        for i, f in enumerate(fns):
            self.add(lo + (hi - lo) * i / max(1, len(fns)), f)

    def run(self, mfmas):
        it = sorted(self.items, key=lambda x: (x[0], x[1]))
        k = 0
        while k < len(it) and it[k][0] < 0:
            it[k][2](); k += 1
        for n, m in enumerate(mfmas):
            m()
            while k < len(it) and it[k][0] < n + 1:
                it[k][2](); k += 1
        while k < len(it):
            it[k][2](); k += 1


class KF:
    def __init__(self, a, stamps=False, stop=None, **kw):
        self.a, self.stamps, self.stop = a, stamps, stop
        self.p = dict(P); self.p.update(kw)
        self.vm, self.lg = Cnt(a, "vmcnt", 63), Cnt(a, "lgkmcnt", 15)
        self.tail = []
        self.wslots = [("v", 156 + 4 * i) for i in range(25)] + [("a", 160 + 4 * i) for i in range(24)]

    def st(self, i):
        if self.stamps:
            stamp(self.a, i)

    def signal(self, kind):
        a = self.a
        l = a.label("sig")
        a(f"s_cmp_lg_u32 s{sW}, 0\ns_cbranch_scc1 {l}\ns_mov_b64 exec, 1")
        a(f"buffer_atomic_add v{vONE}, off, s[{LS}:{LS+3}], s{sFL} offset:{256*kind} sc1")
        a(f"s_mov_b64 exec, -1\n{l}:")

    def spin(self, kind, done):
        a = self.a
        l = a.label("spin")
        a(f"""s_movk_i32 s{sSP}, {SPIN}
{l}:
buffer_load_dword v{vPOLL}, off, s[{LS}:{LS+3}], s{sFL} offset:{256*kind} sc1
s_waitcnt vmcnt(0)
v_readfirstlane_b32 s{sT}, v{vPOLL}
s_cmp_ge_u32 s{sT}, 16
s_cbranch_scc1 {done}
s_sub_u32 s{sSP}, s{sSP}, 1
s_cbranch_scc0 {l}
s_branch {done}""")

    def poll_issue(self, kind):
        return self.vm.issue(f"buffer_load_dword v{vPOLL}, off, s[{LS}:{LS+3}], s{sFL} offset:{256*kind} sc1")

    def poll_check(self, kind, tok):
        a = self.a
        slow, done = a.label("slow"), a.label("ok")
        self.vm.wait(tok)
        a(f"v_readfirstlane_b32 s{sT}, v{vPOLL}\ns_cmp_lt_u32 s{sT}, 16\ns_cbranch_scc1 {slow}\n{done}:")
        self.tail.append((slow, kind, done))

    def row_reduce(self, regs, tmp, halves=(16, 32)):
        a = self.a
        for h in halves:
            for i, r in enumerate(regs):
                a(f"v_mov_b32 v{tmp+i}, v{r}")
            a("s_nop 0" if len(regs) > 1 else "s_nop 1")
            for i, r in enumerate(regs):
                a(f"v_permlane{h}_swap_b32 v{r}, v{tmp+i}")
            for i, r in enumerate(regs):
                a(f"v_add_f32 v{r}, v{r}, v{tmp+i}")

    def moments(self, vs, vq, t):
        a = self.a
        a(f"v_mul_f32 v{vs}, s{sINV}, v{vs}\nv_mul_f32 v{t}, v{vs}, v{vs}\nv_fma_f32 v{vq}, v{vq}, s{sINV}, -v{t}\nv_max_f32 v{vq}, 0, v{vq}")
        bf16r(a, vs); bf16r(a, vq)
        a(f"v_add_f32 v{vq}, {f32(1e-5)}, v{vq}")
        bf16r(a, vq)
        a(f"v_sqrt_f32 v{vq}, v{vq}\ns_nop 0")
        bf16r(a, vq)

    def setup(self):
        a = self.a
        a.srd(WS, "ws"); a.srd(LS, "ws"); a.srd(OUT, "out"); a.srd(QS, "q")
        t = sT
        a(f"""
v_lshrrev_b32 v{vL}, 6, v0
s_lshr_b32 s{t}, s2, 3
v_readfirstlane_b32 s{sW}, v{vL}
v_and_b32 v{vL}, 63, v0
s_and_b32 s{sJH}, s2, 1
s_bfe_u32 s{sRB}, s2, 0x20001
s_lshl_b32 s{sRB}, s{sRB}, 2
s_lshr_b32 s{t+1}, s{t}, 3
s_add_u32 s{sRB}, s{sRB}, s{t+1}
s_and_b32 s{sCB}, s{t}, 7
s_lshl_b32 s{t+1}, s{t+1}, 1
s_add_u32 s{t+1}, s{t+1}, s{sCB}
v_lshlrev_b32 v{vL16}, 4, v{vL}
v_lshlrev_b32 v{vT16}, 4, v0
v_and_b32 v40, 15, v{vL}
v_lshrrev_b32 v41, 4, v{vL}
s_lshl_b32 s{t+2}, s{sRB}, 7
s_lshl_b32 s{t+3}, s{sJH}, 6
s_add_u32 s{t+3}, s{t+3}, s{t+2}
s_lshl_b32 s{t+4}, s{sW}, 4
s_add_u32 s{t+3}, s{t+3}, s{t+4}
v_add_u32 v42, s{t+3}, v40
v_mul_u32_u24 v{vOUT}, 1280, v42
s_mul_i32 s{t+4}, s{sCB}, 160
v_lshl_add_u32 v43, v41, 3, s{t+4}
v_add_u32 v{vOUT}, v{vOUT}, v43
v_lshlrev_b32 v44, 3, v42
v_lshrrev_b32 v45, 1, v{vL}
v_lshlrev_b32 v45, 12, v45
v_and_b32 v46, 1, v{vL}
v_lshl_add_u32 v45, v46, 4, v45
s_mul_i32 s{t+4}, s{sCB}, {80*4096}
s_lshl_b32 s{t+5}, s{t+3}, 1
s_add_u32 s{t+4}, s{t+4}, s{t+5}
s_add_u32 s{t+4}, s{t+4}, {YT}
s_mul_i32 s{t+5}, s{sW}, 3072
s_add_u32 s{t+5}, s{t+5}, {RING+35*4096}
s_mov_b32 m0, s{t+5}
s_waitcnt lgkmcnt(0)
""")
        a.srd_fin(WS, "ws", 0, LBASE); a.srd_fin(QS, "q")
        vm = self.vm
        ty = []
        for i in range(3):
            if i == 2:
                a("s_mov_b64 exec, 0xffffffff")
            ty.append(vm.issue(f"buffer_load_dwordx4 v45, s[{WS}:{WS+3}], s{t+4} offen lds"))
            if i < 2:
                a(f"s_add_u32 s{t+4}, s{t+4}, {32*4096}\ns_add_u32 m0, m0, 1024\ns_nop 0")
        a(f"s_mov_b64 exec, -1\ns_mov_b32 s{t+4}, {QST}")
        tq = [vm.issue(f"buffer_load_dwordx2 v[{vXR+2*d}:{vXR+2*d+1}], v{vOUT}, s[{QS}:{QS+3}], 0 offen offset:{32*d}") for d in range(5)]
        ts = vm.issue(f"buffer_load_dwordx2 v[48:49], v44, s[{WS}:{WS+3}], s{t+4} offen")
        a.srd_fin(LS, "ws", LBASE, LSTEP); a.srd_fin(OUT, "out")
        a(f"v_lshl_add_u32 v50, v{vL}, 3, s{t+5}")
        a(f"""
v_add_u32 v{vRD}, {RING}, v{vL16}
v_add_u32 v{vRD+1}, {RING+65536}, v{vL16}
v_add_u32 v{vRD+2}, {RING+131072}, v{vL16}
v_add_u32 v{vL16B}, 4096, v{vL16}
v_mov_b32 v{vONE}, 1
v_lshlrev_b32 v{vSTX}, 6, v42
s_lshl_b32 s{t+4}, s{sCB}, 3
v_add_u32 v{vST}, s{t+4}, v{vSTX}
v_lshl_add_u32 v{vSTX}, v41, 4, v{vSTX}
v_add_u32 v{vSTX}, {STX}, v{vSTX}
v_lshrrev_b32 v43, 1, v41
v_lshlrev_b32 v43, 5, v43
v_add_u32 v43, v43, v40
s_and_b32 s{t+4}, s{sW}, 1
s_lshl_b32 s{t+4}, s{t+4}, 4
v_add_u32 v43, s{t+4}, v43
v_lshlrev_b32 v43, 4, v43
v_and_b32 v46, 1, v41
v_lshl_add_u32 v{vXST}, v46, 3, v43
s_lshr_b32 s{t+4}, s{t+3}, 5
s_mul_i32 s{t+4}, s{t+4}, 40
s_mul_i32 s{t+5}, s{sCB}, 5
s_add_u32 s{t+4}, s{t+4}, s{t+5}
s_lshl_b32 s{sXS}, s{t+4}, 10
s_lshl_b32 s{t+4}, s{sRB}, 2
s_add_u32 s{t+4}, s{t+4}, s{sW}
s_mul_i32 s{sXA}, s{t+4}, 40960
v_and_b32 v43, 31, v{vL}
s_lshl_b32 s{t+4}, s{t+4}, 5
v_add_u32 v43, s{t+4}, v43
v_lshlrev_b32 v43, 6, v43
v_lshrrev_b32 v46, 5, v{vL}
v_lshl_add_u32 v{vG1S}, v46, 5, v43
v_add_u32 v{vG1S}, {ST2_O}, v{vG1S}
v_bfe_u32 v43, v{vL}, 4, 1
v_mul_u32_u24 v43, 55296, v43
v_lshl_add_u32 v43, v46, 8, v43
v_lshl_add_u32 v{vHST}, v40, 4, v43
s_lshl_b32 s{sFL}, s{sRB}, 10
s_add_u32 s{sFL}, s{sFL}, {FLAGS_O}
s_lshl_b32 s{sM0}, s{sW}, 10
s_add_u32 s{sM0}, s{sM0}, {RING}
s_mov_b32 s{sINV}, {f32(1/640)}
""")
        for pt in range(4):
            a(f"s_add_u32 s{t+4}, s{sW}, {pt}\ns_and_b32 s{t+4}, s{t+4}, 3\ns_mul_i32 s{t+4}, s{t+4}, 55296\nv_add_u32 v{vHL+pt}, s{t+4}, v{vL16}")
        for c in range(10):
            a(f"s_add_u32 s{t+4}, s{t+1}, {c}\ns_cmp_ge_u32 s{t+4}, 10\ns_cselect_b32 s{t+5}, 10, 0\ns_sub_u32 s{t+4}, s{t+4}, s{t+5}")
            a(f"s_cmp_ge_u32 s{t+4}, 10\ns_cselect_b32 s{t+5}, 10, 0\ns_sub_u32 s{t+4}, s{t+4}, s{t+5}\ns_lshl_b32 s{sCH+c}, s{t+4}, 12")
        a(f"""
s_lshl_b32 s{t+4}, s{sJH}, 3
s_add_u32 s{t+4}, s{t+4}, s{sCB}
s_mul_i32 s{t+5}, s{t+4}, 7
s_mul_i32 s{t+6}, s{t+4}, 6
s_add_u32 s{t+6}, s{t+6}, 12
s_min_u32 s{t+5}, s{t+5}, s{t+6}
s_mul_i32 s{t+6}, s{t+4}, 3
s_lshl_b32 s{t+7}, s{t+4}, 1
s_add_u32 s{t+7}, s{t+7}, 12
s_min_u32 s{t+6}, s{t+6}, s{t+7}
s_lshl_b32 s{sEX}, s{t+5}, 10
s_add_u32 s{sEX}, s{sEX}, {W1X}
s_add_u32 s{sEX6}, s{sEX}, 6144
s_mul_i32 s{sTB}, s{t+5}, 40960
s_add_u32 s{sTB}, s{sTB}, {W1P}
s_lshl_b32 s{t+7}, s{sRB}, 3
s_lshl_b32 s{t+2}, s{sW}, 1
s_add_u32 s{t+2}, s{t+2}, s{t+7}
s_mul_i32 s{t+2}, s{t+2}, 55296
s_add_u32 s{t+2}, s{t+2}, {HF_O}
s_lshl_b32 s{t}, s{sJH}, 2
s_add_u32 s{t+7}, s{t+7}, s{t}
s_mul_i32 s{sHB}, s{t+7}, 55296
s_add_u32 s{sHB}, s{sHB}, {HF_O}
s_mul_i32 s{sWB}, s{sCB}, 276480
s_add_u32 s{sWB}, s{sWB}, {W2P}
""")
        for tt in range(1, 7):
            a(f"s_add_u32 s{sTB+tt}, s{sTB+tt-1}, 40960")
        for tt in range(7):
            if tt < 4:
                a(f"s_lshl_b32 s{t}, s{t+4}, 2\ns_add_u32 s{t}, s{t}, {tt}")
            else:
                a(f"s_add_u32 s{t}, s{t+6}, {60+tt}")
            a(f"s_lshl_b32 s{t}, s{t}, 9\ns_add_u32 s{sHS+tt}, s{t}, s{t+2}")
        a(f"s_cmp_ge_u32 s{t+4}, 12\ns_cselect_b32 s{sTB+6}, {DUMMY}, s{sTB+6}\ns_cselect_b32 s{sHS+6}, {DUMMY}, s{sHS+6}\ns_cselect_b32 s{sEX6}, {DUMMY}, s{sEX6}")
        for i in range(8):
            a(f"s_add_u32 s{t}, s{t+1}, {i}\ns_and_b32 s{t}, s{t}, 7\ns_lshl_b32 s{t+2}, s{sW}, 3\ns_add_u32 s{t}, s{t}, s{t+2}\ns_lshl_b32 s{sK+i}, s{t}, 10")
        a(f"s_mul_i32 s{t}, s{sW}, 6\ns_min_u32 s{t}, s{t}, 17\ns_add_u32 s{t}, s{t}, 32\ns_lshl_b32 s{sK+8}, s{t}, 10")
        for i in range(9, 14):
            a(f"s_add_u32 s{sK+i}, s{sK+i-1}, 1024")
        a(f"s_cmp_ge_u32 s{sW}, 2\ns_cselect_b32 s{sK+13}, {DUMMY}, s{sK+13}")
        vm.wait(ty[2])
        for d in range(5):
            self.lg.issue(f"ds_read_b64_tr_b16 v[{vY+2*d}:{vY+2*d+1}], v50 offset:{512*d}")
        vm.wait(ts)
        XV = vG2
        for d in range(10):
            a(f"v_lshlrev_b32 v{XV+2*d}, 16, v{vXR+d}\nv_and_b32 v{XV+2*d+1}, 0xffff0000, v{vXR+d}")
        a(f"v_mov_b32 v{vC0}, v48\nv_mov_b32 v{vC1}, v49")
        self.lg.all()

    def e_post(self, layer):
        a, vm = self.a, self.vm
        XV, T = vG2, vG2 + 20
        a(f"v_mul_f32 v{vR}, v{vC0}, v{vC1}\nv_mov_b32 v{T+4}, 0\nv_mov_b32 v{T+5}, 0")
        for d in range(10):
            x0, x1 = XV + 2 * d, XV + 2 * d + 1
            a(f"""v_lshlrev_b32 v{T}, 16, v{vY+d}
v_and_b32 v{T+1}, 0xffff0000, v{vY+d}
v_fma_f32 v{T+2}, v{x0}, v{vC1}, -v{vR}
v_fma_f32 v{T+3}, v{x1}, v{vC1}, -v{vR}
v_fmac_f32 v{x0}, v{T+2}, v{T}
v_fmac_f32 v{x1}, v{T+3}, v{T+1}
v_cvt_pk_bf16_f32 v{vXR+d}, v{x0}, v{x1}""")
            if d % 2 == 1:
                dt = d // 2
                if dt == 4:
                    a(f"s_add_u32 s{sT}, s{sXS}, 4096")
                so = f"s{sXS} offen offset:{1024*dt}" if dt < 4 else f"s{sT} offen"
                vm.issue(f"buffer_store_dwordx2 v[{vXR+d-1}:{vXR+d}], v{vXST}, s[{LS}:{LS+3}], {so} sc1")
        for d in range(20):
            a(f"v_add_f32 v{T+4}, v{T+4}, v{XV+d}\nv_fmac_f32 v{T+5}, v{XV+d}, v{XV+d}")
        self.row_reduce([T + 4, T + 5], T)
        a(f"s_mov_b32 s{sT}, {ST2_O}\ns_mov_b64 exec, 0xffff")
        tok = vm.issue(f"buffer_store_dwordx2 v[{T+4}:{T+5}], v{vST}, s[{LS}:{LS+3}], s{sT} offen sc1")
        a("s_mov_b64 exec, -1")
        w0, join = a.label("w0"), a.label("fx")
        a(f"s_cmp_eq_u32 s{sW}, 0\ns_cbranch_scc1 {w0}")
        a(f"s_sub_u32 s{sT+1}, s{sW}, 1\ns_mul_i32 s{sT+2}, s{sT+1}, 40960\ns_add_u32 s{sT+2}, s{sT+2}, s{sTB}\ns_lshl_b32 s{sT+1}, s{sT+1}, 12\ns_add_u32 s{sT+1}, s{sT+1}, {RING}")
        n = 0
        for c in range(10):
            a(f"s_add_u32 m0, s{sT+1}, {3*4096*c}\ns_add_u32 s{sT+3}, s{sT+2}, s{sCH+c}")
            for i in range(4):
                if n == self.p["npre"]:
                    a(f"s_waitcnt vmcnt({n})\ns_barrier")
                a(f"buffer_load_dwordx4 v{vL16}, s[{WS}:{WS+3}], s{sT+3} offen offset:{1024*i} lds")
                n += 1
        a(f"s_branch {join}\n{w0}:\ns_waitcnt vmcnt(0)\ns_barrier\ns_mov_b64 exec, 1")
        a(f"buffer_atomic_add v{vONE}, off, s[{LS}:{LS+3}], s{sFL} sc1\ns_mov_b64 exec, -1")
        got = a.label("got")
        self.spin(0, got)
        a(f"{got}:")
        if layer == 0:
            a(f"s_mov_b32 m0, 0\ns_add_u32 s{sT+3}, s{sEX}, 4096")
            for i in range(4):
                a(f"buffer_load_dwordx4 v{vL16}, s[{WS}:{WS+3}], s{sEX} offen offset:{1024*i} lds")
            a("s_movk_i32 m0, 4096\ns_nop 0")
            for i in range(2):
                a(f"buffer_load_dwordx4 v{vL16}, s[{WS}:{WS+3}], s{sT+3} offen offset:{1024*i} lds")
            a(f"s_movk_i32 m0, 6144\ns_nop 0\nbuffer_load_dwordx4 v{vL16}, s[{WS}:{WS+3}], s{sEX6} offen lds")
        a(f"{join}:\ns_barrier")
        vm.reset()

    def g1(self, layer):
        a, vm, lg, p = self.a, self.vm, self.lg, self.p
        S_ = Sched()
        seq = [(t, c, i) for c in range(10) for i in range(4) for t in range(3)] + [(t, None, None) for t in range(3)]
        for t in range(3, 7):
            seq += [(t, c, i) for c in range(10) for i in range(4)] + [(t, None, None)]
        N = len(seq)
        fill_of = lambda t, c: 3 * c + t if t < 3 else 30 + 10 * (t - 3) + c
        AH, NB_ = 4, 6
        xt, rt, ft = {}, {}, {}

        def xload(k):
            def f():
                c, i = divmod(k, 4)
                if i == 0:
                    a(f"s_add_u32 s{sT+4}, s{sXA}, s{sCH+c}")
                xt[k] = vm.issue(f"buffer_load_dwordx4 {R('a', 4*k)}, v{vL16}, s[{LS}:{LS+3}], s{sT+4} offen offset:{1024*i} sc1")
            return f

        def rd(n):
            def f():
                t, c, i = seq[n]
                if c is None:
                    a_ = f"v{vL16} offset:{1024*t}"
                else:
                    idx = fill_of(t, c)
                    assert idx < 30 or idx in cert, (n, idx)
                    off = (idx % NSLOT) * 4096 + 1024 * i
                    a_ = f"v{vRD + off // 65536} offset:{off % 65536}"
                rt[n] = lg.issue(f"ds_read_b128 {R('v', vWF + 4 * (n % NB_))}, {a_}")
            return f

        def fill(idx):
            def f():
                t, c = 3 + (idx - 30) // 10, (idx - 30) % 10
                assert idx < NSLOT or idx - NSLOT < freed[0], idx
                a(f"s_add_u32 m0, s{sM0}, {(idx % NSLOT) * 4096}\ns_add_u32 s{sT+5}, s{sTB+t}, s{sCH+c}")
                ft[idx] = vm.issue(f"buffer_load_dwordx4 v{vT16}, s[{WS}:{WS+3}], s{sT+5} offen lds")
            return f

        cert, freed = set(), [0]
        bars = [23, 47, 71, 95, 119, 142, 183, 224, p["fe_pub"]]
        est = {}

        def bar(k):
            def f():
                nxt = bars[k + 1] if k + 1 < len(bars) else N
                need = {fill_of(*seq[n][:2]) for n in range(min(N, nxt + AH + 1)) if seq[n][1] is not None}
                need = [i for i in need if i >= 30]
                if need:
                    vm.wait(max(ft[i] for i in need))
                if k == len(bars) - 1:
                    vm.wait(est[3])
                a("s_barrier")
                cert.update(need)
                done = [fill_of(*seq[n][:2]) for n in range(bars[k] + 1, N) if seq[n][1] is not None]
                freed[0] = min(done)
                if k == len(bars) - 1:
                    self.signal(1)
            return f

        def mf(n):
            def f():
                t, c, i = seq[n]
                acc = vACC + 16 * (t % 4 if t < 4 else t - 4)
                if n % 2 == 0:
                    lg.wait(rt[min(n + 1, N - 1)])
                lg.wait(rt[n])
                if c is None:
                    b = R("v", vEXT)
                else:
                    vm.wait(xt[4 * c + i])
                    b = R("a", 16 * c + 4 * i)
                cin = "0" if (c == 0 and i == 0) else f"v[{acc}:{acc+15}]"
                a(f"v_mfma_f32_32x32x16_bf16 v[{acc}:{acc+15}], {R('v', vWF + 4 * (n % NB_))}, {b}, {cin}")
            return f

        def epi(t):
            acc = vACC + 16 * (t % 4 if t < 4 else t - 4)
            o = vET + 4 + 4 * (t & 1)
            L = []
            for e in range(0, 8, 2):
                g0, g1_, u0, u1, t0, t1 = acc + e, acc + e + 1, acc + 8 + e, acc + 9 + e, vET + (e & 2), vET + (e & 2) + 1
                L += [f"v_mul_f32 v{t0}, v{g0}, v{g0}", f"v_mul_f32 v{t1}, v{g1_}, v{g1_}",
                      f"v_fma_f32 v{t0}, v{t0}, v{vC1}, v{vC0}", f"v_fma_f32 v{t1}, v{t1}, v{vC1}, v{vC0}",
                      f"v_mul_f32 v{t0}, v{t0}, v{g0}", f"v_mul_f32 v{t1}, v{t1}, v{g1_}",
                      f"v_exp_f32 v{t0}, v{t0}", f"v_exp_f32 v{t1}, v{t1}",
                      f"v_mul_f32 v{u0}, v{g0}, v{u0}",
                      f"v_fma_f32 v{t0}, v{t0}, v{vR}, v{vR}", f"v_fma_f32 v{t1}, v{t1}, v{vR}, v{vR}",
                      f"v_rcp_f32 v{t0}, v{t0}", f"v_rcp_f32 v{t1}, v{t1}",
                      f"v_mul_f32 v{u1}, v{g1_}, v{u1}",
                      f"v_mul_f32 v{u0}, v{u0}, v{t0}", f"v_mul_f32 v{u1}, v{u1}, v{t1}",
                      f"v_cvt_pk_bf16_f32 v{o + e // 2}, v{u0}, v{u1}"]
            fs = [(lambda s: (lambda: a(s)))(s) for s in L]

            def store():
                est[t] = vm.issue(f"buffer_store_dwordx4 {R('v', o)}, v{vHST}, s[{LS}:{LS+3}], s{sHS+t} offen sc1")
            return fs + [store]

        T = vET
        ts = [vm.issue(f"buffer_load_dwordx4 {R('v', T + 4 * h)}, v{vG1S}, s[{LS}:{LS+3}], 0 offen offset:{16*h} sc1") for h in range(2)]
        for k in range(p["x_ahead"]):
            xload(k)()
        vm.wait(xt[0])
        a("s_barrier")
        for n in range(AH):
            rd(n)()

        def stats():
            a(f"v_add_f32 v{T}, v{T}, v{T+2}\nv_add_f32 v{T+1}, v{T+1}, v{T+3}\nv_add_f32 v{T+4}, v{T+4}, v{T+6}\nv_add_f32 v{T+5}, v{T+5}, v{T+7}")
            a(f"v_add_f32 v{T}, v{T}, v{T+4}\nv_add_f32 v{T+1}, v{T+1}, v{T+5}")
            self.row_reduce([T, T + 1], T + 2, halves=(32,))
            self.moments(T, T + 1, T + 2)
            c0 = -2 * math.log2(math.e) * math.sqrt(2 / math.pi)
            a(f"""v_rcp_f32 v{T+2}, v{T+1}
v_mul_f32 v{vR}, v{T+1}, v{T+1}
v_xor_b32 v{T}, 0x80000000, v{T}
v_mul_f32 v{vC0}, {f32(c0)}, v{T+2}
v_mul_f32 v{T+3}, v{T+2}, v{T+2}
v_lshrrev_b32 v{T+4}, 16, v{T}
v_mul_f32 v{T+3}, v{T+3}, v{T+2}
v_or_b32 v{T}, v{T}, v{T+4}
v_cmp_gt_u32 vcc, 32, v{vL}
v_mul_f32 v{vC1}, {f32(c0*0.044715)}, v{T+3}
v_mov_b32 v{vEXT+2}, 0
v_mov_b32 v{vEXT+3}, 0
v_cndmask_b32 v{vEXT}, 0, v{T}, vcc
v_cndmask_b32 v{vEXT+1}, 0, v{T+4}, vcc""")
        cut = len(a.text)
        stats()
        lines = a.text[cut:]; del a.text[cut:]
        S_.spread(6, 60, [(lambda s: (lambda: a(s)))(s) for s in lines])

        for k in range(p["x_ahead"], 40):
            S_.add(3 * (k - p["x_ahead"]) + 0.2, xload(k))
        for n in range(AH, N):
            S_.add(n - AH + 0.1, rd(n))
        for k, b in enumerate(bars):
            S_.add(b + 0.6, bar(k))
        fpos = {}
        for idx in range(30, 70):
            pos = 12 + (idx - 30) * 4.2
            if idx >= NSLOT:
                pos = max(pos, min(b for b in bars if min(fill_of(*seq[n][:2]) for n in range(b + 1, N) if seq[n][1] is not None) > idx - NSLOT) + 0.7)
            fpos[idx] = pos
            S_.add(pos + 0.7, fill(idx))
        for t, (lo, hi) in enumerate([(125, 151), (151, 178), (178, 204), (206, 232), (232, 259), (259, 286)]):
            S_.spread(lo + 0.3, hi + 0.3, epi(t))
        if layer == 0:
            self.wt = {}
            S_.spread(126.8, 250.8, [self.wload(k, self.wslots[k]) for k in range(49)])
        pt_ = {}
        S_.add(p["fe_poll"] + 0.8, lambda: pt_.__setitem__(0, self.poll_issue(1)))
        S_.add(p["fe_chk"] + 0.8, lambda: self.poll_check(1, pt_[0]))
        self.ht = {}
        self.g2_plan()
        S_.spread(p["fe_chk"] + 1.8, N - 0.2, [self.g2_loads.pop(0) for _ in range(8)])
        S_.run([mf(n) for n in range(N)])
        for _ in range(8):
            self.g2_loads.pop(0)()
        a("s_nop 1")
        for f in epi(6):
            f()
        self.last_store = est[6]

    def wload(self, k, slot):
        def f():
            s, d = divmod(k, 5)
            if d == 0 or k == 49:
                self.a(f"s_mul_i32 s{sWd}, s{sK+s}, 5\ns_add_u32 s{sWd}, s{sWd}, s{sWB}")
            va = f"v{vL16}" if d < 4 else f"v{vL16B}"
            self.wt[k] = (self.vm.issue(f"buffer_load_dwordx4 {R(*slot)}, {va}, s[{WS}:{WS+3}], s{sWd} offen offset:{1024*(d%4)}"), slot)
        return f

    def hload(self, s, pt):
        def f():
            slot = self.free.pop(0)
            if pt == 0:
                self.a(f"s_add_u32 s{sH}, s{sHB}, s{sK+s}")
            self.ht[(s, pt)] = (self.vm.issue(f"buffer_load_dwordx4 {R(*slot)}, v{vHL+pt}, s[{LS}:{LS+3}], s{sH} offen sc1"), slot)
        return f

    def g2_plan(self):
        self.free = [("a", 4 * k) for k in range(19)]
        self.g2_loads, self.g2_step = [], []
        for s in range(14):
            for k in range(5 * s, 5 * s + 5):
                if k >= 49:
                    self.g2_loads.append(self.wload(k, ("a", 76 + 4 * (k - 49)))); self.g2_step.append(s)
            for pt in range(4):
                self.g2_loads.append(self.hload(s, pt)); self.g2_step.append(s)

    def g2(self, layer):
        a, vm, lg, p = self.a, self.vm, self.lg, self.p
        if layer == 1:
            self.wt.update({k: (None, self.wslots[k]) for k in range(49)})
        self.free += [("v", vWF + 4 * i) for i in range(5)]
        seq = [(s, pt, d) for s in range(12) for pt in range(4) for d in range(5)]
        seq += [(s, pt, d) for pt in (1, 2, 3, 0) for s in (12, 13) for d in range(5)]
        N = len(seq)
        S_ = Sched()
        steps = self.g2_step[len(self.g2_step) - len(self.g2_loads):]
        by_step = {}
        for f, s in zip(self.g2_loads, steps):
            by_step.setdefault(s, []).append(f)
        for s, fs in by_step.items():
            lo = 20 * (s - p["look"])
            if s >= 8:
                lo = max(lo, p["fl_chk"] + 1 + 12 * (s - 8))
            S_.spread(lo + 0.5, lo + 19.5 if s < 8 or lo == 20 * (s - p["look"]) else lo + 12, fs)
        self.g2_loads = []

        def pub():
            vm.wait(self.last_store)
            a("s_barrier")
            self.signal(2)
        S_.add(p["fl_pub"] + 0.2, pub)
        tk = {}
        S_.add(p["fl_poll"] + 0.2, lambda: tk.__setitem__(0, self.poll_issue(2)))
        S_.add(p["fl_chk"] + 0.2, lambda: self.poll_check(2, tk[0]))
        vA = vWF + 20

        def addr():
            for pt in range(1, 4):
                a(f"s_add_u32 s{sT}, s{sW}, {pt}\ns_and_b32 s{sT}, s{sT}, 3\ns_mul_i32 s{sT}, s{sT}, 15360\ns_add_u32 s{sT}, s{sT}, {RING + 5120 * (pt - 1)}\nv_add_u32 v{vA+pt}, s{sT}, v{vL16}")
            a(f"s_mul_i32 s{sT}, s{sW}, 15360\ns_add_u32 s{sT}, s{sT}, {RING}\nv_add_u32 v{vA}, s{sT}, v{vL16}")
        S_.add(200.2, addr)
        for q, pt in enumerate((1, 2, 3)):
            S_.spread(240 + 10 * q + 13.2, 240 + 10 * q + 22,
                      [(lambda pt, d: (lambda: lg.issue(f"ds_write_b128 v{vA+pt}, {R('v', vG2 + 20 * pt + 4 * d)} offset:{1024*d}")))(pt, d) for d in range(5)])

        def mf(n):
            def f():
                s, pt, d = seq[n]
                wtok, wslot = self.wt[5 * s + d]
                htok, hslot = self.ht[(s, pt)]
                vm.wait(wtok); vm.wait(htok)
                acc = vG2 + 20 * pt + 4 * d
                cin = "0" if s == 0 else R("v", acc)
                a(f"v_mfma_f32_16x16x32_bf16 {R('v', acc)}, {R(*wslot)}, {R(*hslot)}, {cin}")
                if d == 4:
                    self.free.append(hslot)
            return f
        S_.run([mf(n) for n in range(N)])
        lg.all()
        self.st(3 if layer == 0 else 7)
        a("s_barrier")
        tr = []
        for q in range(3):
            for d in range(5):
                tr.append(lg.issue(f"ds_read_b128 {R('v', vG2 + 20 * (q + 1) + 4 * d)}, v{vA} offset:{5120*q+1024*d}"))
        XV = vG2
        for d in range(10):
            a(f"v_lshlrev_b32 v{vWF}, 16, v{vXR+d}\nv_and_b32 v{vWF+1}, 0xffff0000, v{vXR+d}\nv_add_f32 v{XV+2*d}, v{XV+2*d}, v{vWF}\nv_add_f32 v{XV+2*d+1}, v{XV+2*d+1}, v{vWF+1}")
        for q in range(3):
            for d in range(5):
                lg.wait(tr[5 * q + d])
                for r in range(4):
                    a(f"v_add_f32 v{XV+4*d+r}, v{XV+4*d+r}, v{XV+20*(q+1)+4*d+r}")

    def exchange(self):
        a, vm = self.a, self.vm
        XV, T = vG2, vG2 + 20
        a(f"v_mov_b32 v{T+4}, 0\nv_mov_b32 v{T+5}, 0")
        for d in range(20):
            a(f"v_add_f32 v{T+4}, v{T+4}, v{XV+d}\nv_fmac_f32 v{T+5}, v{XV+d}, v{XV+d}")
        self.row_reduce([T + 4, T + 5], T)
        a(f"s_mov_b32 s{sT}, {STX}\ns_mov_b64 exec, 0xffff")
        a(f"buffer_store_dwordx2 v[{T+4}:{T+5}], v{vST}, s[{WS}:{WS+3}], s{sT} offen sc1")
        l, done = a.label("xch"), a.label("xok")
        a(f"""s_mov_b64 exec, -1
s_barrier
s_movk_i32 s{sSP}, {SPIN}
{l}:
buffer_load_dwordx4 {R('v', T)}, v{vSTX}, s[{WS}:{WS+3}], 0 offen sc1
s_waitcnt vmcnt(0)
v_and_b32 v{T+4}, v{T}, v{T+1}
v_and_b32 v{T+5}, v{T+2}, v{T+3}
v_max_u32 v{T+4}, v{T+4}, v{T+5}
v_cmp_eq_u32 vcc, -1, v{T+4}
s_and_b64 vcc, exec, vcc
s_cbranch_vccz {done}
s_sub_u32 s{sSP}, s{sSP}, 1
s_cbranch_scc0 {l}
{done}:
v_add_f32 v{T}, v{T}, v{T+2}
v_add_f32 v{T+1}, v{T+1}, v{T+3}""")
        vm.reset()
        self.row_reduce([T, T + 1], T + 2)
        self.moments(T, T + 1, T + 2)
        a(f"v_rcp_f32 v{vC1}, v{T+1}\nv_mov_b32 v{vC0}, v{T}")
        a(f"s_add_u32 s{LS}, s{LS}, {LSTEP}\ns_addc_u32 s{LS+1}, s{LS+1}, 0")

    def final(self):
        a = self.a
        XV = vG2
        for d in range(5):
            a(f"v_cvt_pk_bf16_f32 v{vXR+2*d}, v{XV+4*d}, v{XV+4*d+1}\nv_cvt_pk_bf16_f32 v{vXR+2*d+1}, v{XV+4*d+2}, v{XV+4*d+3}")
            a(f"buffer_store_dwordx2 v[{vXR+2*d}:{vXR+2*d+1}], v{vOUT}, s[{OUT}:{OUT+3}], 0 offen offset:{32*d} {self.p['out_flags']}")

    def gen(self, kidx):
        a = self.a
        a.launch("kf_kernel", 256, 256, KF_LDS)
        a.begin("kf_kernel")
        a("s_cmp_ge_u32 s2, 256\ns_cbranch_scc1 L_kf_exit")
        self.st(0)
        self.setup()
        for layer in range(2):
            self.e_post(layer)
            self.st(1 if layer == 0 else 5)
            self.g1(layer)
            self.st(2 if layer == 0 else 6)
            self.g2(layer)
            if layer == 0:
                self.exchange()
                self.st(4)
        self.final()
        if self.stamps:
            stamp_flush(a, kidx, 8, stmp=24)
        a("L_kf_exit:\ns_endpgm")
        for slow, kind, done in self.tail:
            a(slow + ":")
            self.spin(kind, done)
        a("L_kf_end:")
        a.end("kf_kernel", 512, 102, 256)


def build(path, stamps=False, **kw):
    import gen_front, hazards
    a = Asm()
    gen_front.gen_front_split(a, stamps=stamps, code_lo="kf_kernel", code_bytes="L_kf_end-kf_kernel")
    KF(a, stamps=stamps, **kw).gen(2)
    txt = a.render()
    open(path, "w").write(txt)
    for e in hazards.check(txt):
        print("HAZARD line %d -> %d need %d have %d: %s => %s" % e)


if __name__ == "__main__":
    build("v1.s"); build("v1_st.s", stamps=True)
```

```python
from asmlib import *
from layout import *
import gen_front as gf
import gen_kf as gk
from gen_kf import *

C1, UO, WSTR = gf.C1, gf.UO, gf.WSTR
KN = NAME + "_kernel"
cA, cB, cY, cW = 20, 24, 25, 26
cD, cACC, cST = 40, 72, 104


class All(KF):
    def init_check(self):
        a = self.a
        ok = a.label("initok")
        a(f"s_cmp_lg_u32 s{sW}, 0\ns_cbranch_scc1 {ok}\ns_mov_b32 s{sT+1}, {INIT}")
        self.spin(f"s{sT+1}", 0, f"s{sNONCE}", ok, dst=62)
        a(f"{ok}:\nv_mov_b32 v{vONE}, 1\nv_lshlrev_b32 v{vFA}, 8, v{vL}")

    def conv_role(self):
        a, vm, lg, p = self.a, self.vm, self.lg, self.p
        for dst, src, nm in ((32, 58, "k"), (36, 60, "v"), (40, 62, "shift"), (44, 64, "ssmk"), (48, 66, "ssmd")):
            a(f"s_mov_b64 s[{dst}:{dst+1}], s[{src}:{src+1}]\ns_mov_b32 s{dst+2}, 0x{NB[nm]:x}\ns_mov_b32 s{dst+3}, 0x20000")
        a("s_mul_i32 s23, s22, 20\ns_add_u32 s23, s23, s21\ns_mov_b32 s101, s23\ns_and_b32 s24, s23, 15\ns_lshr_b32 s23, s23, 4")
        a(f"buffer_load_dword v181, off, s[{WS}:{WS+3}], s54 sc1")
        cut = len(a.text)
        for _ in gf.phase_a(a, vm, "sc1"):
            pass
        a.text[cut:] = [x.replace("s[4:7]", "s[32:35]").replace("s[8:11]", "s[36:39]").replace("s[12:15]", "s[40:43]").replace("s[16:19]", f"s[{WS}:{WS+3}]")
                        for x in a.text[cut:]]
        self.st("astore")
        a(f"s_mov_b32 s{sT+1}, {INIT}")
        tst = vm.issue(self.cload(f"s{sT+1}", 0, 62))
        a(f"""
s_lshl_b32 s28, s101, 2
s_add_u32 s28, s28, s20
s_lshl_b32 s{sCHN}, s28, 12
v_lshlrev_b32 v158, 4, v1
s_lshl_b32 s30, s28, 1
v_mov_b32 v159, s30
v_readfirstlane_b32 s{sNONCE}, v181
""")
        th = []
        for i in range(4):
            vm.issue(f"buffer_load_dwordx4 v[{160+4*i}:{163+4*i}], v158, s[44:47], s{sCHN} offen offset:{1024*i}")
            th.append(vm.issue(f"buffer_load_dword v{176+i}, v158, s[44:47], s{sCHN} offen offset:{1024*i+16}"))
        th.append(vm.issue("buffer_load_ushort v180, v159, s[48:51], 0 offen"))
        a(f"s_add_u32 s{sNONCE}, s{sNONCE}, 1")
        self.check(tst, f"s{sT+1}", 0, f"s{sNONCE}", dst=62)
        a(f"s_barrier\nv_mov_b32 v{vONE}, 1\nv_lshlrev_b32 v{vFA}, 8, v{vL}")
        a(f"s_lshr_b32 s{sT+1}, s101, 4\ns_lshl_b32 s{sT+1}, s{sT+1}, 8\ns_add_u32 s{sT+1}, s{sT+1}, {FA}")
        self.arrive(f"s{sT+1}")
        self.st("asig")
        self.setup_regs()
        a(f"s_mul_i32 s31, s20, {WSTR}\ns_add_u32 s31, s31, {RING}\nv_add_u32 v{cW}, s31, v158")
        for r in range(188, 192):
            a(f"v_mov_b32 v{r}, 0")
        a("s_mov_b64 exec, 0x3fffffff")
        lg.issue(f"ds_write_b128 v{cW}, v[188:191] offset:{UO+4096}")
        a("s_mov_b64 exec, 3")
        lg.issue(f"ds_write_b128 v{cW}, v[188:191]")
        a("s_mov_b64 exec, -1")
        for i in range(4):
            b = 160 + 4 * i
            vm.wait(th[i])
            if i == 0:
                a("v_readfirstlane_b32 s30, v160")
            lg.issue(f"ds_write_b128 v{cW}, v[{b}:{b+3}] offset:{32+1024*i}")
            o = 192 + 4 * (i & 1)
            for d in range(4):
                hi = b + d + 1 if d < 3 else 176 + i
                a(f"v_alignbit_b32 v{o+d}, v{hi}, v{b+d}, 16")
            lg.issue(f"ds_write_b128 v{cW}, v[{o}:{o+3}] offset:{C1+32+1024*i}")
        vm.wait(th[4])
        a("""
s_lshl_b32 s30, s30, 16
v_cmp_eq_u32 vcc, 1, v1
v_mov_b32 v181, s30
s_nop 0
v_cndmask_b32 v191, 0, v181, vcc
s_mov_b64 exec, 3
""")
        lg.issue(f"ds_write_b128 v{cW}, v[188:191] offset:{C1}")
        a("""s_mov_b64 exec, -1
v_and_b32 v181, 15, v1
v_lshrrev_b32 v182, 4, v1
v_lshl_add_u32 v183, v182, 3, v181
v_sub_u32 v184, 15, v183
v_lshlrev_b32 v156, 16, v180
""")
        for r in range(4):
            a(f"v_cmp_eq_u32 vcc, {2*r}, v184\ns_nop 1\nv_cndmask_b32 v{cD+r}, 0, v180, vcc\nv_cmp_eq_u32 vcc, {2*r+1}, v184\ns_nop 1\nv_cndmask_b32 v{cD+r}, v{cD+r}, v156, vcc")
        a(f"""
v_add_u32 v{cA}, 1, v183
v_and_b32 v{cA+1}, 1, v{cA}
v_lshrrev_b32 v{cA}, 1, v{cA}
v_lshlrev_b32 v{cA}, 2, v{cA}
v_mul_u32_u24 v{cA+1}, {C1}, v{cA+1}
v_add3_u32 v{cA}, v{cA}, v{cA+1}, s31
v_add_u32 v{cA+1}, 1024, v{cA}
v_add_u32 v{cA+2}, 2048, v{cA}
v_add_u32 v{cA+3}, 3072, v{cA}
v_lshlrev_b32 v{cB}, 4, v182
v_lshlrev_b32 v156, 5, v181
v_sub_u32 v{cB}, v{cB}, v156
s_add_u32 s30, s31, {UO+480}
v_add_u32 v{cB}, s30, v{cB}
v_lshrrev_b32 v{cY}, 1, v182
v_lshl_add_u32 v{cY}, v{cY}, 4, v156
v_and_b32 v182, 1, v182
v_lshl_add_u32 v{cY}, v182, 9, v{cY}
v_add_u32 v{cY}, {YT}, v{cY}
""")
        a(f"s_lshr_b32 s{sT+1}, s101, 4\ns_lshl_b32 s{sT+1}, s{sT+1}, 8\ns_add_u32 s{sT+1}, s{sT+1}, {FA}")
        self.wait0(f"s{sT+1}", 0, 16)
        a("s_barrier")
        vm.reset()
        self.st("agot")
        t = [vm.issue(f"buffer_load_dwordx4 {R('v', cST+4*i)}, v{vL16}, s[{WS}:{WS+3}], s{sCHN} offen offset:{1024*i} sc1") for i in range(4)]


        def rdA(q):
            out = []
            for x in range(8):
                r, o = 64 * (q & 1) + 4 * x, 128 * (x & 1) + 16 * (q & 1)
                out.append(f"ds_read2_b32 a[{r}:{r+1}], v{cA+(x>>1)} offset0:{o} offset1:{o+1}")
                out.append(f"ds_read2_b32 a[{r+2}:{r+3}], v{cA+(x>>1)} offset0:{o+2} offset1:{o+3}")
            if q & 1:
                out += [f"v_add_u32 v{cA+i}, 128, v{cA+i}" for i in range(4)]
            return out

        def rdB(q):
            return [f"ds_read_b128 {R('a', 64*(q&1)+32+4*x)}, v{cB} offset:{512*(7-x)+64*q}" for x in range(8)]
        lg.all()
        for r in rdA(0):
            a(r)
        for i in range(4):
            vm.wait(t[i])
            a(f"ds_write_b128 v{cW}, {R('v', cST+4*i)} offset:{UO+1024*i}")
        a("s_waitcnt lgkmcnt(0)")
        for r in rdB(0):
            a(r)
        a("s_waitcnt lgkmcnt(0)")
        lg.reset()
        self.st("cstart")
        for j in range(8):
            a(f"v_mfma_f32_16x16x32_bf16 {R('v', cACC+4*j)}, {R('v', cD)}, {R('a', 32+4*j)}, 0")
        S_ = Sched()
        ms = [(q, pp, j) for q in range(7) for pp in range(8) for j in range(pp, 8)] + [(7, pp, j) for j in range(8) for pp in range(j + 1)]
        em = lambda s: (lambda: a(s))
        for q in range(1, 8):
            A, B = rdA(q), rdB(q)
            mix = []
            for x in range(8):
                mix += [B[x], A[2 * x], A[2 * x + 1]]
            S_.spread(36 * (q - 1), 36 * (q - 1) + 30, [em(x) for x in mix + A[16:]])
            S_.add(36 * q - 0.5, em("s_waitcnt lgkmcnt(0)"))

        S_.spread(2.6, 30, self.res_loads()[:5])
        tk = {}
        S_.add(262.6, lambda: tk.__setitem__(0, vm.issue(self.cload(f"s{sREP}", 0))))

        def ypair(q):
            o = cST + 4 * q
            L = [em(f"v_cvt_pk_bf16_f32 v{o+i}, v{cACC+8*q+2*i}, v{cACC+8*q+2*i+1}") for i in range(4)]
            L += [em("s_nop 0"), em(f"v_permlane16_swap_b32 v{o}, v{o+2}\nv_permlane16_swap_b32 v{o+1}, v{o+3}")]
            L.append(lambda: vm.issue(f"buffer_store_dwordx4 {R('v', o)}, v{cY}, s[{WS}:{WS+3}], s{sCHN} offen offset:{1024*q} sc1"))
            return L
        for q, end in enumerate((2, 9, 20)):
            S_.spread(252 + end + 6, 252 + end + 13, ypair(q))

        def mf(q, pp, j):
            return lambda: a(f"v_mfma_f32_16x16x32_bf16 {R('v', cACC+4*j)}, {R('a', 64*(q&1)+4*pp)}, {R('a', 64*(q&1)+32+4*(j-pp))}, {R('v', cACC+4*j)}")
        S_.run([mf(*m) for m in ms])
        self.st("cend")
        a("s_nop 5")
        for f in ypair(3):
            f()
        a("s_waitcnt vmcnt(0)\ns_barrier")
        vm.reset()
        a(f"s_mul_i32 s{sT+1}, s101, 3277\ns_lshr_b32 s{sT+1}, s{sT+1}, 16\ns_lshl_b32 s{sT+1}, s{sT+1}, 10\ns_add_u32 s{sT+1}, s{sT+1}, {FY}")
        self.arrive(f"s{sT+1}", nrep=4)
        self.st("ysig")
        self.check(None, f"s{sREP}", 0, 96, sleep=4)
        self.res_loads()[5]()
        self.res_shadow()
        vm.reset()

    def qs_issue(self, job, base):
        a, vm = self.a, self.vm
        a(f"s_lshl_b32 s35, {job}, 2\nv_lshrrev_b32 v2, 4, v1\nv_add_u32 v2, s35, v2\nv_and_b32 v3, 15, v1\nv_mul_u32_u24 v4, 1280, v2\nv_lshl_add_u32 v4, v3, 4, v4".replace("s35", "s55"))
        a(f"v_lshlrev_b32 v{base+20}, 3, v2\nv_add_u32 v{base+20}, {QST}, v{base+20}")
        return [vm.issue(f"buffer_load_dwordx4 {R('v', base+4*n)}, v4, s[{QS}:{QS+3}], 0 offen offset:{256*n}") for n in range(5)]

    def qs_finish(self, t, base):
        a, vm = self.a, self.vm
        s_, q_ = base + 22, base + 23
        a(f"v_mov_b32 v{s_}, 0\nv_mov_b32 v{q_}, 0\nv_mov_b32 v{base+21}, 0x3f803f80")
        for n in range(5):
            vm.wait(t[n])
            for d in range(4):
                r = base + 4 * n + d
                a(f"v_dot2_f32_bf16 v{s_}, v{r}, v{base+21}, v{s_}\nv_dot2_f32_bf16 v{q_}, v{r}, v{r}, v{q_}")
        a("s_nop 2")
        for sh in (8, 4, 2, 1):
            a(f"v_add_f32_dpp v{s_}, v{s_}, v{s_} row_ror:{sh} row_mask:0xf bank_mask:0xf\nv_add_f32_dpp v{q_}, v{q_}, v{q_} row_ror:{sh} row_mask:0xf bank_mask:0xf\ns_nop 0")
        self.moments(s_, q_, base)
        a(f"v_rcp_f32 v{q_}, v{q_}\ns_mov_b32 exec_lo, 0x00010001\ns_mov_b32 exec_hi, 0x00010001")
        vm.issue(f"buffer_store_dwordx2 v[{s_}:{q_}], v{base+20}, s[{WS}:{WS+3}], 0 offen sc1")
        a("s_mov_b64 exec, -1")

    def w1_unit(self):
        a, vm, lg = self.a, self.vm, self.lg
        a(f"""
v_lshrrev_b32 v2, 3, v1
v_and_b32 v3, 7, v1
s_mul_i32 s29, s28, 160
v_add_u32 v4, s29, v2
v_mul_u32_u24 v4, 3456, v4
v_lshl_add_u32 v4, v3, 4, v4
s_lshl_b32 s36, s27, 7
""")
        t = []

        def ld():
            i = len(t)
            if i < 20:
                t.append(vm.issue(f"buffer_load_dwordx4 {R('v', 32+4*i)}, v4, s[32:35], s36 offen"))
                a(f"s_add_u32 s36, s36, {8*3456}")
        for _ in range(self.p["w_ahead"]):
            ld()
        a(f"""
s_mul_i32 s29, s20, 20992
v_bfe_u32 v5, v2, 1, 1
v_lshlrev_b32 v5, 2, v5
v_xor_b32 v5, v5, v3
v_lshlrev_b32 v5, 4, v5
v_lshl_add_u32 v5, v2, 7, v5
v_add_u32 v5, s29, v5
v_bfe_u32 v6, v1, 2, 2
v_lshrrev_b32 v7, 5, v1
v_lshl_add_u32 v7, v7, 3, v6
v_lshlrev_b32 v7, 7, v7
v_bfe_u32 v8, v1, 4, 1
v_bfe_u32 v9, v1, 1, 1
v_lshl_add_u32 v9, v8, 1, v9
v_lshrrev_b32 v6, 1, v6
v_lshlrev_b32 v6, 2, v6
v_xor_b32 v9, v9, v6
v_lshl_add_u32 v7, v9, 4, v7
v_and_b32 v6, 1, v1
v_lshl_add_u32 v7, v6, 3, v7
v_add_u32 v7, s29, v7
v_xor_b32 v6, 64, v7
v_and_b32 v9, 15, v1
v_lshlrev_b32 v9, 4, v9
v_lshl_add_u32 v10, v8, 10, v9
v_mul_u32_u24 v8, 40960, v8
v_add_u32 v8, v8, v9
v_lshrrev_b32 v9, 5, v1
v_lshl_add_u32 v8, v9, 9, v8
s_lshl_b32 s30, s26, 8
s_mul_i32 s31, s27, {4*40960}
s_add_u32 s30, s30, s31
s_mul_i32 s31, s28, 10240
s_add_u32 s30, s30, s31
s_add_u32 s30, s30, {W1P}
s_add_u32 s31, s30, {2*40960}
v_mov_b32 v12, 0x3f803f80
v_mov_b32 v13, 0x3f803f80
v_mov_b32 v14, 0x3f803f80
v_mov_b32 v15, 0x3f803f80
""")
        for ks in range(10):
            for h in range(2):
                i = 2 * ks + h
                vm.wait(t[i])
                lg.issue(f"ds_write_b128 v5, {R('v', 32+4*i)} offset:{1024*i}")
                ld()
            lg.all()
            tk = []
            for pr in range(2):
                b = 16 + 8 * (ks & 1) + 4 * pr
                lg.issue(f"ds_read_b64_tr_b16 v[{b}:{b+1}], v{7-pr} offset:{2048*ks}")
                tk.append(lg.issue(f"ds_read_b64_tr_b16 v[{b+2}:{b+3}], v{7-pr} offset:{2048*ks+512}"))
            for pr in range(2):
                b = 16 + 8 * (ks & 1) + 4 * pr
                lg.wait(tk[pr])
                c = "0" if ks == 0 else f"v[{112+16*pr}:{127+16*pr}]"
                a(f"v_mfma_f32_32x32x16_bf16 v[{112+16*pr}:{127+16*pr}], v[12:15], {R('v', b)}, {c}")
                vm.issue(f"buffer_store_dwordx4 {R('v', b)}, v8, s[{WS}:{WS+3}], s{30+pr} offen sc1")
                a(f"s_add_u32 s{30+pr}, s{30+pr}, 1024")
        a(f"""
s_lshl_b32 s30, s27, 12
s_lshl_b32 s31, s26, 8
s_add_u32 s30, s30, s31
s_lshr_b32 s31, s28, 1
s_lshl_b32 s31, s31, 9
s_add_u32 s30, s30, s31
s_and_b32 s31, s28, 1
s_lshl_b32 s31, s31, 3
s_add_u32 s30, s30, s31
s_add_u32 s30, s30, {W1X}
s_nop 3
""")
        for pr in range(2):
            x, o = 112 + 16 * pr, 20 + 2 * pr
            a(f"""v_cvt_pk_bf16_f32 v17, v{x}, v{x}
v_lshlrev_b32 v18, 16, v17
v_sub_f32 v16, v{x}, v18
v_cvt_pk_bf16_f32 v18, v16, v16
v_lshlrev_b32 v19, 16, v18
v_sub_f32 v16, v16, v19
v_cvt_pk_bf16_f32 v16, v16, v16
v_and_b32 v17, 0xffff, v17
v_or_b32 v{o}, v17, v19
v_and_b32 v{o+1}, 0xffff, v16
s_mov_b64 exec, 0xffffffff""")
            vm.issue(f"buffer_store_dwordx2 v[{o}:{o+1}], v10, s[{WS}:{WS+3}], s30 offen offset:{2048*pr} sc1")
            a("s_mov_b64 exec, -1")

    def w2_lanes(self):
        a = self.a
        for i in range(5):
            a(f"v_add_u32 v15, {64*i}, v1\nv_mul_u32_u24 v16, 3277, v15\nv_lshrrev_b32 v16, 16, v16\nv_mul_u32_u24 v17, 20, v16\nv_sub_u32 v15, v15, v17\nv_lshlrev_b32 v15, 4, v15")
            a(f"v_mad_u32_u24 v{2+i}, v16, s30, v15\nv_mad_u32_u24 v{7+i}, v16, s31, v15\nv_add_u32 v{7+i}, s29, v{7+i}")
        a(f"""
v_bfe_u32 v15, v1, 2, 2
v_bfe_u32 v16, v1, 4, 1
v_lshl_add_u32 v15, v16, 2, v15
v_mul_u32_u24 v15, 352, v15
v_lshrrev_b32 v17, 5, v1
v_lshl_add_u32 v15, v17, 5, v15
v_and_b32 v12, 3, v1
v_lshl_add_u32 v15, v12, 3, v15
v_add_u32 v12, s29, v15
v_and_b32 v15, 15, v1
v_lshlrev_b32 v15, 4, v15
v_lshl_add_u32 v15, v16, 8, v15
v_lshl_add_u32 v13, v17, 10, v15
v_mul_u32_u24 v17, {276480-4096}, v17
v_add_u32 v14, v17, v15
""")

    def w2_tile(self):
        a, vm, lg = self.a, self.vm, self.lg
        a("s_mul_i32 s36, s25, 20480\ns_mul_i32 s37, s20, 320\ns_add_u32 s36, s36, s37")
        t = [vm.issue(f"buffer_load_dwordx4 {R('v', 32+4*i)}, v{2+i}, s[32:35], s36 offen") for i in range(5)]
        l1, l2, l3 = a.label("w2"), a.label("w2"), a.label("w2")
        a(f"""
s_lshr_b32 s26, s25, 1
s_and_b32 s27, s25, 1
s_cmp_lt_u32 s25, 32
s_cbranch_scc1 {l2}
s_sub_u32 s27, s25, 32
s_cmp_lt_u32 s27, 60
s_cbranch_scc0 {l1}
s_mul_i32 s26, s27, 13108
s_lshr_b32 s26, s26, 16
s_mul_i32 s30, s26, 5
s_sub_u32 s27, s27, s30
s_add_u32 s27, s27, 2
s_branch {l2}
{l1}:
s_sub_u32 s27, s27, 60
s_lshr_b32 s26, s27, 2
s_add_u32 s26, s26, 12
s_and_b32 s27, s27, 3
s_add_u32 s27, s27, 2
{l2}:
s_lshl_b32 s30, s26, 1
s_add_u32 s31, s26, 12
s_min_u32 s31, s31, s30
s_add_u32 s31, s31, 75
s_add_u32 s30, s30, 45
s_cmp_lt_u32 s27, 5
s_cselect_b32 s30, s30, s31
s_mul_i32 s31, s26, 3
s_cmp_lt_u32 s27, 3
s_cselect_b32 s30, s31, s30
s_add_u32 s30, s30, s27
s_lshr_b32 s31, s30, 1
s_mul_i32 s31, s31, 5120
s_and_b32 s30, s30, 1
s_lshl_b32 s30, s30, 9
s_add_u32 s30, s30, s31
s_add_u32 s30, s30, {W2P}
s_mul_i32 s31, s20, {2*276480}
s_add_u32 s30, s30, s31
""")
        for i in range(5):
            vm.wait(t[i])
            lg.issue(f"ds_write_b128 v{7+i}, {R('v', 32+4*i)}")
        lg.all()
        tk = []
        for q in range(5):
            b = 56 + 4 * q
            lg.issue(f"ds_read_b64_tr_b16 v[{b}:{b+1}], v12 offset:{64*q}")
            tk.append(lg.issue(f"ds_read_b64_tr_b16 v[{b+2}:{b+3}], v12 offset:{64*q+8*352}"))
        for q in range(5):
            dt = 2 * q
            a(f"s_add_u32 s31, s30, {(dt // 5) * 276480 + (dt % 5) * 1024}")
            lg.wait(tk[q])
            vm.issue(f"buffer_store_dwordx4 {R('v', 56+4*q)}, v{14 if (dt + 1) % 5 == 0 else 13}, s[{WS}:{WS+3}], s31 offen sc1")

    def side_role(self):
        a, vm, lg = self.a, self.vm, self.lg
        lq4, lend, lno = a.label("q4"), a.label("sideend"), a.label("now2")
        a(f"buffer_load_dword v250, off, s[{WS}:{WS+3}], s54 sc1")
        a("s_sub_u32 s101, s21, 20\ns_lshl_b32 s101, s101, 3\ns_add_u32 s101, s101, s22\ns_mul_i32 s53, s20, 96\ns_add_u32 s53, s53, s101")
        a(f"s_cmp_lg_u32 s53, 383\ns_cbranch_scc1 L_noinit\nv_lshlrev_b32 v2, 8, v1\nv_mov_b32 v3, 0\ns_mov_b32 s25, {CNT}")
        a(f"buffer_store_dword v3, v2, s[{WS}:{WS+3}], s25 offen sc1\ns_waitcnt vmcnt(0)\nv_add_u32 v4, 1, v250")
        a(f"s_mov_b32 s26, {INIT}\ns_mov_b64 exec, 1\nbuffer_store_dword v4, off, s[{WS}:{WS+3}], s26 sc1\ns_mov_b64 exec, -1")
        for i in range(3):
            a(f"s_add_u32 s25, s25, 16384\nbuffer_store_dword v3, v2, s[{WS}:{WS+3}], s25 offen sc1")
        a(f"L_noinit:\ns_waitcnt vmcnt(0)\nv_readfirstlane_b32 s{sNONCE}, v250\ns_mov_b32 s{sT+1}, {INIT}\ns_add_u32 s{sNONCE}, s{sNONCE}, 1")
        if self.p["side_gate"]:
            self.spin(f"s{sT+1}", 0, f"s{sNONCE}", "L_inited", dst=62, sleep=1)
            a("L_inited:")
        self.st("sgo")
        a(f"s_cmp_ge_u32 s53, 344\ns_cbranch_scc1 {lend}\ns_cmp_ge_u32 s53, 216\ns_cbranch_scc1 {lq4}")
        vm.reset(); lg.reset()
        a("s_and_b32 s28, s53, 3\ns_lshr_b32 s27, s53, 3\ns_bitcmp1_b32 s53, 2\ns_cselect_b32 s26, 1, 0\ns_cselect_b64 s[32:33], s[72:73], s[70:71]")
        a(f"s_mov_b32 s34, 0x{NB['wg']:x}\ns_mov_b32 s35, 0x20000")
        self.w1_unit()
        a(f"s_branch {lend}\n{lq4}:")
        vm.reset(); lg.reset()
        a("s_sub_u32 s53, s53, 216\ns_lshl_b32 s53, s53, 2")
        tqs = []
        for i in range(4):
            tqs.append(self.qs_issue("s53", 32 + 24 * i))
            a("s_add_u32 s53, s53, 1")
        for i in range(4):
            self.qs_finish(tqs[i], 32 + 24 * i)
        a(f"{lend}:")
        self.st("wend")
        vm.reset(); lg.reset()
        a("s_waitcnt vmcnt(0)\ns_barrier")
        vm.reset()
        self.init_check()
        a(f"s_mov_b32 s{sT+1}, {FP}")
        self.arrive(f"s{sT+1}", nrep=8)
        self.st("psig")
        l2 = a.label("w2b")
        a(f"s_cmp_lt_u32 s101, 24\ns_cbranch_scc1 {lno}")
        a(f"s_load_dwordx2 s[32:33], s[0:1], {KA['wd']}\ns_mov_b32 s34, 0x{NB['wd']:x}\ns_mov_b32 s35, 0x20000\ns_mul_i32 s29, s20, 5632\ns_movk_i32 s30, 1280\ns_movk_i32 s31, 352")
        self.w2_lanes()
        a("s_sub_u32 s25, s101, 24\ns_waitcnt lgkmcnt(0)")
        self.w2_tile()
        a(f"s_cmp_lt_u32 s101, 60\ns_cbranch_scc1 {l2}\ns_add_u32 s25, s101, 12")
        vm.reset(); lg.reset()
        self.w2_tile()
        a(f"{l2}:\ns_waitcnt vmcnt(0)\nv_mov_b32 v{vONE}, 1\nv_lshlrev_b32 v{vFA}, 8, v{vL}\ns_mov_b32 s{sT+1}, {FP3}\ns_barrier")
        self.arrive(f"s{sT+1}", nrep=8)
        a(f"{lno}:")
        self.st("w2end")
        vm.reset(); lg.reset()
        self.setup_regs()
        a(f"v_mov_b32 v{vONE}, 1")
        self.wait0(f"s{sREP}", 0, 96, sleep=1)
        a("s_barrier")
        self.st("pgot")
        for f in self.res_loads():
            f()
        a("s_waitcnt vmcnt(0)")
        vm.reset()

    def gen(self):
        a = self.a
        a.launches.append("; @launch grid=(256,1,1) block=(256,1,1) lds=%d" % KF_LDS)
        a.begin(KN)
        a("s_cmp_ge_u32 s2, 256\ns_cbranch_scc1 L_exit")
        self.st("start")
        a(f"""
s_load_dwordx16 s[56:71], s[0:1], 0
s_load_dwordx8 s[72:79], s[0:1], 64
s_load_dwordx2 s[{WS}:{WS+1}], s[0:1], 96
s_getpc_b64 s[40:41]
L_pc:
s_lshr_b32 s21, s2, 3
s_lshl_b32 s22, s21, 4
v_add_u32 v1, s22, v0
v_lshlrev_b32 v1, 7, v1
v_cmp_gt_u32 vcc, L_code_end-L_pc, v1
v_cmp_gt_u32 s[42:43], 16, v0
s_and_b64 vcc, vcc, s[42:43]
s_and_saveexec_b64 s[42:43], vcc
s_cbranch_execz L_pc_x
global_load_dword v255, v1, s[40:41]
L_pc_x:
s_mov_b64 exec, s[42:43]
v_lshrrev_b32 v1, 6, v0
s_nop 0
v_readfirstlane_b32 s20, v1
s_and_b32 s22, s2, 7
v_and_b32 v1, 63, v0
s_mov_b32 s{WS+2}, {LBASE}
s_mov_b32 s{WS+3}, 0x20000
s_mov_b32 s{LS+2}, {2*LSTEP}
s_mov_b32 s{LS+3}, 0x20000
s_mov_b32 s{OUT+2}, {NB['out']}
s_mov_b32 s{OUT+3}, 0x20000
s_mov_b32 s{QS+2}, {NB['q']}
s_mov_b32 s{QS+3}, 0x20000
s_mov_b32 s54, {EPOCH}
s_waitcnt lgkmcnt(0)
s_mov_b64 s[{QS}:{QS+1}], s[56:57]
s_mov_b64 s[{OUT}:{OUT+1}], s[76:77]
s_mov_b32 s{sINV}, {f32(1/640)}
s_add_u32 s{LS}, s{WS}, {LBASE}
s_addc_u32 s{LS+1}, s{WS+1}, 0
s_cmp_ge_u32 s21, 20
s_cbranch_scc1 L_side
""")
        self.conv_role()
        a("L_ywait:")
        a(f"s_lshl_b32 s{sT+1}, s{sCB}, 10\ns_and_b32 s{sT+2}, s2, 3\ns_lshl_b32 s{sT+2}, s{sT+2}, 8\ns_add_u32 s{sT+1}, s{sT+1}, s{sT+2}\ns_add_u32 s{sT+1}, s{sT+1}, {FY}")
        self.wait0(f"s{sT+1}", 0, 20)
        a("s_barrier")
        self.st("ygot")
        self.e1()
        self.body()
        a(f"s_cmp_lg_u32 s2, 0\ns_cbranch_scc1 L_noep\nv_mov_b32 v60, s{sNONCE}\ns_mov_b32 s{sT}, {EPOCH}\nbuffer_store_dword v60, off, s[{WS}:{WS+3}], s{sT} sc1\nL_noep:")
        if self.stamps:
            stamp_flush(a, 0, 8, stmp=24)
        a("L_exit:\ns_endpgm")
        self.tails()
        self.tail = []
        a("L_side:")
        self.side_role()
        a("s_branch L_ywait\nL_code_end:")
        a.end(KN, 512, 102, 256)


def build(path, stamps=False, **kw):
    import hazards
    a = Asm()
    k = All(a, stamps=stamps, **kw)
    for key, val in dict(pp_poll=70, pp_chk=100, pp_end=250, w_ahead=12, side_gate=0).items():
        k.p.setdefault(key, val)
    k.gen()
    if kw.get("show"):
        print(" ".join("%.1f" % x for x in k.load1))
    txt = a.render()
    if kw.get("show"):
        for e in hazards.check(txt):
            print(path, "padded: line %d -> %d need %d have %d: %s => %s" % e)
    open(path, "w").write(hazards.fix(txt))


if __name__ == "__main__":
    build("v5.s", show=1)
    build("v5_st.s", stamps=True, names=["start", "ygot", "join0", "g1end0", "g2end0", "join1", "g1end1", "end"])
    build("v5_pa.s", stamps=True, names=["start", "astore", "asig", "agot", "cstart", "cend", "ysig", "ygot"])
    build("v5_pb.s", stamps=True, names=["start", "wend", "psig", "ygot", "xst0", "bar00", "join0", "g10@-1"])
    build("v5_pc.s", stamps=True, names=["g2end0", "red", "pub", "polled", "xst1", "bar01", "join1", "g11@-1"])
    build("v5_pd.s", stamps=True, names=["start", "sgo", "wend", "psig", "w2end", "pgot", "ygot", "join0"])
    for l in "01":
        build("v5_g1%s.s" % l, stamps=True, names=["join" + l] + ["g1%s@%s" % (l, x) for x in ("-1", "60", "123", "164", "246", "286.5")] + ["g1end" + l])
        build("v5_g2%s.s" % l, stamps=True, names=["g1end" + l] + ["g2%s@%s" % (l, x) for x in ("39", "80", "120", "160", "220")] + ["g2end" + l, "end" if l == "1" else "red"])
    import subprocess
    for f in ("g10", "g11", "g20", "g21"):
        open("v5_%sc.s" % f, "w").write(open("v5_%s.s" % f).read().replace("s_memrealtime", "s_memtime"))
```

```python
from asmlib import *
from layout import *

C1, UO, WSTR = 4160, 8320, 13312
FRONT_LDS = 4 * 20992


def bf16r(a, v):
    a(f"v_cvt_pk_bf16_f32 v{v}, v{v}, v{v}\nv_lshlrev_b32 v{v}, 16, v{v}")


def finalize_stats(a, vs, vq, t):
    a(f"v_mul_f32 v{vs}, {f32(1/640)}, v{vs}")
    a(f"v_mul_f32 v{t}, v{vs}, v{vs}")
    a(f"v_fma_f32 v{vq}, v{vq}, s34, -v{t}")
    a(f"v_max_f32 v{vq}, 0, v{vq}")
    bf16r(a, vs)
    bf16r(a, vq)
    a(f"v_add_f32 v{vq}, {f32(1e-5)}, v{vq}")
    bf16r(a, vq)
    a(f"v_sqrt_f32 v{vq}, v{vq}\ns_nop 0")
    bf16r(a, vq)
    a(f"v_rcp_f32 v{vq}, v{vq}\ns_nop 0")


def ids(a):
    a("""
v_lshrrev_b32 v1, 6, v0
s_lshr_b32 s21, s2, 3
v_readfirstlane_b32 s20, v1
s_and_b32 s22, s2, 7
v_and_b32 v1, 63, v0
""")


def conv_ids(a):
    a("s_mul_i32 s23, s22, 20\ns_add_u32 s23, s23, s21\ns_and_b32 s24, s23, 15\ns_lshr_b32 s23, s23, 4")


def phase_a(a, vm, st_flags):
    a("""
v_and_b32 v2, 15, v1
v_lshrrev_b32 v3, 4, v1
s_lshl_b32 s25, s24, 7
s_lshl_b32 s26, s20, 5
s_add_u32 s25, s25, s26
v_lshl_add_u32 v3, v3, 3, s25
s_lshl_b32 s26, s23, 6
v_lshl_add_u32 v2, v2, 2, s26
v_mul_u32_u24 v4, 1280, v3
v_lshl_add_u32 v4, v2, 1, v4
v_subrev_u32 v5, 3840, v4
v_lshlrev_b32 v6, 3, v2
s_movk_i32 s27, 5120
""")
    KR, VR, WR = 16, 40, 8
    tw = [vm.issue(f"buffer_load_dwordx4 v[{WR+4*i}:{WR+3+4*i}], v6, s[12:15], 0 offen offset:{16*i}") for i in range(2)]
    tk, tv = [], []
    for i in range(3):
        tk.append(vm.issue(f"buffer_load_dwordx2 v[{KR+2*i}:{KR+1+2*i}], v5, s[4:7], 0 offen offset:{1280*i}"))
    for i in range(8):
        so = "0" if i < 4 else "s27"
        tk.append(vm.issue(f"buffer_load_dwordx2 v[{KR+6+2*i}:{KR+7+2*i}], v4, s[4:7], {so} offen offset:{1280*(i%4)}"))
        tv.append(vm.issue(f"buffer_load_dwordx2 v[{VR+2*i}:{VR+1+2*i}], v4, s[8:11], {so} offen offset:{1280*(i%4)}"))
    a("v_lshlrev_b32 v7, 12, v2\nv_sub_u32 v3, 2040, v3\nv_lshl_add_u32 v7, v3, 1, v7")
    yield
    WU, KU, VU, O = 56, 72, 116, 124
    vm.wait(tw[1])
    for c in range(4):
        for j in range(4):
            src = WR + 2 * c + (j >> 1)
            dst = WU + 4 * j + c
            a(f"v_lshlrev_b32 v{dst}, 16, v{src}" if j % 2 == 0 else f"v_and_b32 v{dst}, 0xffff0000, v{src}")

    def unpack(src, dst):
        for h in range(2):
            a(f"v_lshlrev_b32 v{dst+2*h}, 16, v{src+h}\nv_and_b32 v{dst+2*h+1}, 0xffff0000, v{src+h}")
    vm.wait(tk[2])
    for i in range(3):
        unpack(KR + 2 * i, KU + 4 * i)
    for i in range(8):
        vm.wait(tv[i])
        unpack(KR + 6 + 2 * i, KU + 12 + 4 * i)
        unpack(VR + 2 * i, VU + 4 * (i & 1))
        for pi in range(2):
            o = O + 4 * i + 2 * pi
            kk = lambda r: f"v[{KU+4*r+2*pi}:{KU+4*r+2*pi+1}]"
            ww = lambda j: f"v[{WU+4*j+2*pi}:{WU+4*j+2*pi+1}]"
            a(f"v_pk_mul_f32 v[{o}:{o+1}], {kk(i)}, {ww(3)}")
            for j in (2, 1, 0):
                a(f"v_pk_fma_f32 v[{o}:{o+1}], {kk(i+3-j)}, {ww(j)}, v[{o}:{o+1}]")
            vv = VU + 4 * (i & 1) + 2 * pi
            a(f"v_pk_mul_f32 v[{o}:{o+1}], v[{o}:{o+1}], v[{vv}:{vv+1}]")
    for c in range(4):
        p = 16 + 4 * c
        for d in range(4):
            a(f"v_cvt_pk_bf16_f32 v{p+d}, v{O+4*(7-2*d)+c}, v{O+4*(6-2*d)+c}")
        a(f"s_mov_b32 s27, {4096*c}")
        vm.issue(f"buffer_store_dwordx4 v[{p}:{p+3}], v7, s[16:19], s27 offen {st_flags}")


def conv_h_load(a, vm):
    a("""
s_lshl_b32 s28, s23, 6
s_lshl_b32 s29, s24, 2
s_add_u32 s28, s28, s29
s_add_u32 s28, s28, s20
s_lshl_b32 s29, s28, 12
v_lshlrev_b32 v158, 4, v1
s_lshl_b32 s30, s28, 1
v_mov_b32 v159, s30
""")
    t = []
    for i in range(4):
        vm.issue(f"buffer_load_dwordx4 v[{160+4*i}:{163+4*i}], v158, s[40:43], s29 offen offset:{1024*i}")
        t.append(vm.issue(f"buffer_load_dword v{176+i}, v158, s[40:43], s29 offen offset:{1024*i+16}"))
    t.append(vm.issue("buffer_load_ushort v180, v159, s[44:47], 0 offen"))
    return t


def conv_h_stage(a, vm, lg, t):
    a(f"s_mul_i32 s31, s20, {WSTR}\nv_add_u32 v157, s31, v158")
    for r in range(188, 192):
        a(f"v_mov_b32 v{r}, 0")
    a("s_mov_b64 exec, 0x3fffffff")
    lg.issue(f"ds_write_b128 v157, v[188:191] offset:{UO+4096}")
    a("s_mov_b64 exec, 3")
    lg.issue("ds_write_b128 v157, v[188:191]")
    a("s_mov_b64 exec, -1")
    for i in range(4):
        vm.wait(t[i])
        b = 160 + 4 * i
        lg.issue(f"ds_write_b128 v157, v[{b}:{b+3}] offset:{32+1024*i}")
        if i == 0:
            a("v_readfirstlane_b32 s32, v160")
        o = 192 + 4 * (i & 1)
        for d in range(4):
            hi = b + d + 1 if d < 3 else 176 + i
            a(f"v_alignbit_b32 v{o+d}, v{hi}, v{b+d}, 16")
        lg.issue(f"ds_write_b128 v157, v[{o}:{o+3}] offset:{C1+32+1024*i}")
    a("""
s_lshl_b32 s32, s32, 16
v_cmp_eq_u32 vcc, 1, v1
v_mov_b32 v181, s32
s_nop 0
v_cndmask_b32 v191, 0, v181, vcc
s_mov_b64 exec, 3
""")
    lg.issue(f"ds_write_b128 v157, v[188:191] offset:{C1}")
    a("s_mov_b64 exec, -1")
    vm.wait(t[4])
    a("""
v_and_b32 v181, 15, v1
v_lshrrev_b32 v182, 4, v1
v_lshl_add_u32 v183, v182, 3, v181
v_sub_u32 v183, 15, v183
v_lshlrev_b32 v156, 16, v180
""")
    for r in range(4):
        a(f"""v_cmp_eq_u32 vcc, {2*r}, v183
s_nop 1
v_cndmask_b32 v{184+r}, 0, v180, vcc
v_cmp_eq_u32 vcc, {2*r+1}, v183
s_nop 1
v_cndmask_b32 v{184+r}, v{184+r}, v156, vcc""")
    a(f"""
v_lshl_add_u32 v150, v182, 3, v181
v_add_u32 v150, 1, v150
v_and_b32 v151, 1, v150
v_lshrrev_b32 v150, 1, v150
v_lshlrev_b32 v150, 2, v150
v_mul_u32_u24 v151, {C1}, v151
v_add3_u32 v150, v150, v151, s31
v_add_u32 v151, 1024, v150
v_add_u32 v152, 2048, v150
v_add_u32 v153, 3072, v150
v_lshlrev_b32 v154, 4, v182
v_lshlrev_b32 v156, 5, v181
v_sub_u32 v154, v154, v156
s_add_u32 s32, s31, {UO+480}
v_add_u32 v154, s32, v154
v_lshl_add_u32 v155, v182, 3, v156
""")


def conv_main(a, vm, lg, ld_flags, st_flags, stamps=False):
    t = [vm.issue(f"buffer_load_dwordx4 v[{160+4*i}:{163+4*i}], v158, s[16:19], s29 offen offset:{1024*i} {ld_flags}") for i in range(4)]
    for i in range(4):
        vm.wait(t[i])
        lg.issue(f"ds_write_b128 v157, v[{160+4*i}:{163+4*i}] offset:{UO+1024*i}")
    lg.all()
    BUF = (0, 64)
    ACC = 192

    def reads(buf):
        out = []
        for x in range(8):
            b = BUF[buf] + 32 + 4 * x
            out.append(f"ds_read_b128 v[{b}:{b+3}], v154 offset:{512*(7-x)}")
            p = BUF[buf] + 4 * x
            o = 128 * (x & 1)
            out.append(f"ds_read2_b32 v[{p}:{p+1}], v{150+(x>>1)} offset0:{o} offset1:{o+1}")
            out.append(f"ds_read2_b32 v[{p+2}:{p+3}], v{150+(x>>1)} offset0:{o+2} offset1:{o+3}")
        return out

    def bump():
        return [f"v_add_u32 v{150+i}, 64, v{150+i}" for i in range(5)]

    for r in reads(0):
        a(r)
    for r in bump():
        a(r)
    a("s_waitcnt lgkmcnt(0)")
    for j in range(8):
        b = BUF[0] + 32 + 4 * j
        a(f"v_mfma_f32_16x16x32_bf16 v[{ACC+4*j}:{ACC+3+4*j}], v[184:187], v[{b}:{b+3}], 0")
    if stamps: stamp(a, 4)
    a("s_mov_b32 s33, 0")
    lp = a.label("conv")
    a(lp + ":")
    for buf in range(2):
        fill = reads(1 - buf) + bump()
        ms = [(p, j) for p in range(8) for j in range(p, 8)]
        for n, (p, j) in enumerate(ms):
            A = BUF[buf] + 4 * p
            B = BUF[buf] + 32 + 4 * (j - p)
            a(f"v_mfma_f32_16x16x32_bf16 v[{ACC+4*j}:{ACC+3+4*j}], v[{A}:{A+3}], v[{B}:{B+3}], v[{ACC+4*j}:{ACC+3+4*j}]")
            if fill:
                a(fill.pop(0))
        if buf == 1:
            a("s_add_u32 s33, s33, 1\ns_cmp_lt_u32 s33, 4")
        a("s_waitcnt lgkmcnt(0)")
    a(f"s_cbranch_scc1 {lp}")
    if stamps: stamp(a, 5)
    a("s_nop 4")
    for j in range(8):
        c = ACC + 4 * j
        a(f"v_cvt_pk_bf16_f32 v{2*j}, v{c}, v{c+1}\nv_cvt_pk_bf16_f32 v{2*j+1}, v{c+2}, v{c+3}")
        vm.issue(f"buffer_store_dwordx2 v[{2*j}:{2*j+1}], v155, s[36:39], s29 offen offset:{512*j} {st_flags}")
    lg.reset()


def qstats_job(a, vm, sjob):
    a(f"""
s_lshl_b32 s35, {sjob}, 2
v_lshrrev_b32 v2, 4, v1
v_add_u32 v2, s35, v2
v_and_b32 v3, 15, v1
v_mul_u32_u24 v4, 1280, v2
v_lshl_add_u32 v4, v3, 4, v4
v_lshlrev_b32 v5, 3, v2
""")
    t = [vm.issue(f"buffer_load_dwordx4 v[{8+4*n}:{11+4*n}], v4, s[48:51], 0 offen offset:{256*n}") for n in range(5)]
    a("v_mov_b32 v6, 0\nv_mov_b32 v7, 0\nv_mov_b32 v28, 0x3f803f80")
    for n in range(5):
        vm.wait(t[n])
        for d in range(4):
            r = 8 + 4 * n + d
            a(f"v_dot2_f32_bf16 v6, v{r}, v28, v6\nv_dot2_f32_bf16 v7, v{r}, v{r}, v7")
    a("s_nop 2")
    for sh in (8, 4, 2, 1):
        a(f"v_add_f32_dpp v6, v6, v6 row_ror:{sh} row_mask:0xf bank_mask:0xf\nv_add_f32_dpp v7, v7, v7 row_ror:{sh} row_mask:0xf bank_mask:0xf\ns_nop 0")
    finalize_stats(a, 6, 7, 29)
    a("v_cmp_eq_u32 vcc, 0, v3\ns_and_saveexec_b64 s[56:57], vcc")
    vm.issue("buffer_store_dwordx2 v[6:7], v5, s[52:55], 0 offen sc1")
    a("s_mov_b64 exec, s[56:57]")


def w1_job(a, vm, lg, mid=None, st=None):
    a("""
v_lshrrev_b32 v2, 3, v1
v_and_b32 v3, 7, v1
s_mul_i32 s28, s20, 160
v_add_u32 v4, s28, v2
v_mul_u32_u24 v4, 3456, v4
v_lshl_add_u32 v4, v3, 4, v4
s_lshl_b32 s28, s27, 7
""")
    t = []
    for i in range(20):
        t.append(vm.issue(f"buffer_load_dwordx4 v[{32+4*i}:{35+4*i}], v4, s[4:7], s28 offen"))
        a(f"s_add_u32 s28, s28, {8*3456}")
    a(f"""
s_mul_i32 s29, s20, 20480
v_bfe_u32 v5, v2, 1, 1
v_lshlrev_b32 v5, 2, v5
v_xor_b32 v5, v5, v3
v_lshlrev_b32 v5, 4, v5
v_lshl_add_u32 v5, v2, 7, v5
v_add_u32 v5, s29, v5
v_bfe_u32 v6, v1, 2, 2
v_lshrrev_b32 v7, 5, v1
v_lshl_add_u32 v7, v7, 3, v6
v_lshlrev_b32 v7, 7, v7
v_bfe_u32 v8, v1, 4, 1
v_bfe_u32 v9, v1, 1, 1
v_lshl_add_u32 v9, v8, 1, v9
v_lshrrev_b32 v6, 1, v6
v_lshlrev_b32 v6, 2, v6
v_xor_b32 v9, v9, v6
v_lshl_add_u32 v7, v9, 4, v7
v_and_b32 v6, 1, v1
v_lshl_add_u32 v7, v6, 3, v7
v_add_u32 v7, s29, v7
v_xor_b32 v6, 64, v7
v_mul_u32_u24 v8, 40960, v8
v_lshrrev_b32 v9, 5, v1
v_lshl_add_u32 v8, v9, 9, v8
v_and_b32 v9, 15, v1
v_lshl_add_u32 v8, v9, 4, v8
s_lshl_b32 s30, s26, 8
v_add_u32 v8, s30, v8
s_mul_i32 s30, s27, {4*40960}
s_mul_i32 s31, s20, 10240
s_add_u32 s30, s30, s31
s_add_u32 s31, s30, {2*40960}
v_mov_b32 v12, 0x3f803f80
v_mov_b32 v13, 0x3f803f80
v_mov_b32 v14, 0x3f803f80
v_mov_b32 v15, 0x3f803f80
""")
    if st:
        st("wiss")
    if mid:
        mid()
    for ks in range(10):
        for h in range(2):
            i = 2 * ks + h
            vm.wait(t[i])
            if st and i in (0, 9, 19):
                st("wld%d" % i)
            lg.issue(f"ds_write_b128 v5, v[{32+4*i}:{35+4*i}] offset:{1024*i}")
        lg.all()
        tk = []
        for pr in range(2):
            b = 16 + 8 * (ks & 1) + 4 * pr
            lg.issue(f"ds_read_b64_tr_b16 v[{b}:{b+1}], v{7-pr} offset:{2048*ks}")
            tk.append(lg.issue(f"ds_read_b64_tr_b16 v[{b+2}:{b+3}], v{7-pr} offset:{2048*ks+512}"))
        for pr in range(2):
            b = 16 + 8 * (ks & 1) + 4 * pr
            lg.wait(tk[pr])
            c = "0" if ks == 0 else f"v[{112+16*pr}:{127+16*pr}]"
            a(f"v_mfma_f32_32x32x16_bf16 v[{112+16*pr}:{127+16*pr}], v[12:15], v[{b}:{b+3}], {c}")
            vm.issue(f"buffer_store_dwordx4 v[{b}:{b+3}], v8, s[8:11], s{30+pr} offen sc1")
            a(f"s_add_u32 s{30+pr}, s{30+pr}, 1024")
    a(f"""
s_nop 7
s_barrier
v_and_b32 v2, 31, v1
v_lshlrev_b32 v2, 2, v2
s_lshl_b32 s28, s20, 8
v_add_u32 v3, s28, v2
s_nop 1
""")
    lg.issue("ds_write_b32 v3, v112")
    lg.issue("ds_write_b32 v3, v128 offset:128")
    lg.all()
    a("s_barrier\nv_and_b32 v2, 15, v1\nv_lshlrev_b32 v2, 2, v2\ns_lshl_b32 s28, s20, 6\nv_add_u32 v2, s28, v2")
    for i in range(4):
        lg.issue(f"ds_read_b32 v{16+i}, v2 offset:{256*i}")
    lg.all()
    a("""
v_add_f32 v16, v16, v17
v_add_f32 v18, v18, v19
v_add_f32 v16, v16, v18
v_cvt_pk_bf16_f32 v17, v16, v16
v_lshlrev_b32 v18, 16, v17
v_sub_f32 v16, v16, v18
v_cvt_pk_bf16_f32 v18, v16, v16
v_lshlrev_b32 v19, 16, v18
v_sub_f32 v16, v16, v19
v_cvt_pk_bf16_f32 v16, v16, v16
v_and_b32 v17, 0xffff, v17
v_or_b32 v20, v17, v19
v_and_b32 v21, 0xffff, v16
v_mov_b32 v22, 0
v_mov_b32 v23, 0
v_cmp_gt_u32 vcc, 16, v1
v_and_b32 v2, 15, v1
v_lshlrev_b32 v2, 4, v2
v_cndmask_b32 v20, 0, v20, vcc
v_cndmask_b32 v21, 0, v21, vcc
v_bfe_u32 v3, v1, 4, 1
v_lshl_add_u32 v2, v3, 9, v2
s_lshl_b32 s28, s27, 2
s_add_u32 s28, s28, s20
s_lshl_b32 s28, s28, 10
s_lshl_b32 s29, s26, 8
s_add_u32 s28, s28, s29
s_mov_b64 exec, 0xffffffff
""")
    vm.issue("buffer_store_dwordx4 v[20:23], v2, s[12:15], s28 offen sc1")
    a("s_mov_b64 exec, -1")


def w2_job(a, vm, lg, mid=None, st=None):
    a("s_mul_i32 s28, s25, 20480\nv_lshlrev_b32 v4, 4, v1")
    t = []
    for i in range(20):
        t.append(vm.issue(f"buffer_load_dwordx4 v[{32+4*i}:{35+4*i}], v4, s[4:7], s28 offen offset:{1024*(i%4)}"))
        if i % 4 == 3:
            a("s_add_u32 s28, s28, 4096")
    l1, l2, l3 = a.label("w2"), a.label("w2"), a.label("w2")
    a(f"""
s_cmp_lt_u32 s25, 84
s_cbranch_scc0 {l1}
s_mul_i32 s26, s25, 9363
s_lshr_b32 s26, s26, 16
s_mul_i32 s27, s26, 7
s_sub_u32 s27, s25, s27
s_branch {l2}
{l1}:
s_sub_u32 s27, s25, 84
s_mul_i32 s26, s27, 10923
s_lshr_b32 s26, s26, 16
s_mul_i32 s30, s26, 6
s_sub_u32 s27, s27, s30
s_add_u32 s26, s26, 12
{l2}:
s_lshl_b32 s30, s26, 1
s_add_u32 s31, s26, 12
s_min_u32 s31, s31, s30
s_add_u32 s31, s31, 75
s_add_u32 s30, s30, 45
s_cmp_lt_u32 s27, 5
s_cselect_b32 s30, s30, s31
s_mul_i32 s31, s26, 3
s_cmp_lt_u32 s27, 3
s_cselect_b32 s30, s31, s30
s_add_u32 s30, s30, s27
s_lshr_b32 s31, s30, 1
s_mul_i32 s31, s31, 5120
s_and_b32 s30, s30, 1
s_lshl_b32 s30, s30, 9
s_add_u32 s30, s30, s31
s_mul_i32 s29, s20, 20992
v_bfe_u32 v6, v1, 2, 2
v_bfe_u32 v7, v1, 4, 1
v_lshl_add_u32 v6, v7, 2, v6
v_mul_u32_u24 v6, 1312, v6
v_lshrrev_b32 v8, 5, v1
v_lshl_add_u32 v6, v8, 5, v6
v_and_b32 v9, 3, v1
v_lshl_add_u32 v6, v9, 3, v6
v_add_u32 v6, s29, v6
v_and_b32 v9, 15, v1
v_lshlrev_b32 v9, 4, v9
v_lshl_add_u32 v9, v7, 8, v9
v_lshl_add_u32 v10, v8, 10, v9
v_mul_u32_u24 v8, {276480-4096}, v8
v_add_u32 v11, v8, v9
""")
    if st:
        st("wiss")
    if mid:
        mid()
    for i in range(20):
        a(f"v_add_u32 v2, {64*i}, v1\nv_mul_u32_u24 v3, 52429, v2\nv_lshrrev_b32 v3, 22, v3\nv_lshlrev_b32 v2, 4, v2\nv_lshl_add_u32 v2, v3, 5, v2\nv_add_u32 v2, s29, v2")
        vm.wait(t[i])
        if st and i in (0, 9, 19):
            st("wld%d" % i)
        lg.issue(f"ds_write_b128 v2, v[{32+4*i}:{35+4*i}]")
    lg.all()
    tk = []
    for q in range(20):
        b = 32 + 4 * q
        lg.issue(f"ds_read_b64_tr_b16 v[{b}:{b+1}], v6 offset:{64*q}")
        tk.append(lg.issue(f"ds_read_b64_tr_b16 v[{b+2}:{b+3}], v6 offset:{64*q+8*1312}"))
        if q >= 4:
            w2_store(a, vm, lg, tk, q - 4)
    for q in range(16, 20):
        w2_store(a, vm, lg, tk, q)


def w2_store(a, vm, lg, tk, q):
    b = 32 + 4 * q
    dt = 2 * q
    off = (dt // 5) * 276480 + (dt % 5) * 1024
    a(f"s_add_u32 s31, s30, {off}")
    lg.wait(tk[q])
    vm.issue(f"buffer_store_dwordx4 v[{b}:{b+3}], v{11 if (dt + 1) % 5 == 0 else 10}, s[8:11], s31 offen sc1")


def side_jobs(a, code_lo, code_bytes):
    vm, lg = Cnt(a, "vmcnt", 63), Cnt(a, "lgkmcnt", 15)
    lw2, lmisc, lq = a.label("w2job"), a.label("misc"), a.label("qs")
    a.srd(48, "q"); a.srd(52, "ws"); a.srd(8, "ws"); a.srd(12, "ws")
    a(f"s_mov_b32 s34, {f32(1/640)}\ns_sub_u32 s25, s21, 20\ns_lshl_b32 s25, s25, 3\ns_add_u32 s25, s25, s22\ns_mov_b32 s58, s25")
    a(f"s_cmp_ge_u32 s25, 54\ns_cbranch_scc1 {lw2}")
    a(f"s_cmp_ge_u32 s25, 27\ns_cselect_b32 s26, 1, 0\ns_cselect_b32 s27, 27, 0\ns_sub_u32 s27, s25, s27")
    a(f"s_lshl_b32 s28, s26, 3\ns_add_u32 s28, s28, {KA['wg']}\ns_load_dwordx2 s[4:5], s[0:1], s28\ns_waitcnt lgkmcnt(0)")
    a.srd_fin(4, "wg"); a.srd_fin(8, "ws", W1P, 108 * 40960); a.srd_fin(12, "ws", W1X, 108 * 1024)
    a.srd_fin(48, "q"); a.srd_fin(52, "ws", QST, S * 8)
    w1_job(a, vm, lg)
    a(f"s_branch {lq}")
    a(f"{lw2}:\ns_cmp_ge_u32 s25, 81\ns_cbranch_scc1 {lmisc}")
    vm.reset(); lg.reset()
    a.srd(4, "wd")
    a("s_sub_u32 s25, s25, 54\ns_lshl_b32 s25, s25, 2\ns_add_u32 s25, s25, s20\ns_waitcnt lgkmcnt(0)")
    a.srd_fin(4, "wd"); a.srd_fin(8, "ws", W2P, 8 * 276480)
    a.srd_fin(48, "q"); a.srd_fin(52, "ws", QST, S * 8)
    w2_job(a, vm, lg)
    a(f"{lq}:\ns_lshl_b32 s58, s58, 2\ns_add_u32 s58, s58, s20\ns_cmp_ge_u32 s58, 272\ns_cbranch_scc1 L_front_end")
    vm.reset()
    qstats_job(a, vm, "s58")
    a("s_branch L_front_end")
    a(f"{lmisc}:\ns_waitcnt lgkmcnt(0)")
    a.srd_fin(8, "ws", FLAGS[0], LSTEP + FLAG_BYTES); a.srd_fin(12, "ws", STX, S * 64)
    a.srd_fin(48, "q"); a.srd_fin(52, "ws", QST, S * 8)
    vm.reset()
    lnm = a.label("nomisc")
    a(f"s_cmp_lt_u32 s25, 88\ns_cbranch_scc1 {lnm}")
    a(f"s_sub_u32 s26, s25, 88\ns_and_b32 s27, s26, 3\ns_lshl_b32 s27, s27, 12\ns_lshr_b32 s28, s26, 2\ns_mul_i32 s28, s28, {LSTEP}\ns_add_u32 s27, s27, s28\nv_lshlrev_b32 v2, 4, v0")
    for r in range(4):
        a(f"v_mov_b32 v{8+r}, 0\nv_mov_b32 v{12+r}, -1")
    vm.issue("buffer_store_dwordx4 v[8:11], v2, s[8:11], s27 offen sc1")
    a("s_lshl_b32 s27, s26, 14")
    for i in range(4):
        vm.issue("buffer_store_dwordx4 v[12:15], v2, s[12:15], s27 offen sc1")
        a("s_add_u32 s27, s27, 4096")
    if code_bytes:
        lpc = a.label("pc")
        a(f"s_getpc_b64 s[4:5]\n{lpc}:\ns_add_u32 s4, s4, {code_lo}-{lpc}\ns_addc_u32 s5, s5, 0\nv_lshlrev_b32 v3, 7, v0")
        for i in range(2):
            a(f"v_cmp_gt_u32 vcc, {code_bytes}, v3\ns_and_saveexec_b64 s[56:57], vcc\ns_cbranch_execz {lpc}_{i}")
            vm.issue("global_load_dword v16, v3, s[4:5]")
            a(f"{lpc}_{i}:\ns_mov_b64 exec, s[56:57]\nv_add_u32 v3, 32768, v3")
    a(f"{lnm}:\ns_sub_u32 s58, s25, 81\ns_lshl_b32 s58, s58, 2\ns_add_u32 s58, s58, s20\ns_lshl_b32 s58, s58, 2\ns_add_u32 s58, s58, 272\ns_add_u32 s59, s58, 4")
    lql = a.label("qloop")
    a(lql + ":")
    vm.reset()
    qstats_job(a, vm, "s58")
    a(f"s_add_u32 s58, s58, 1\ns_cmp_lt_u32 s58, s59\ns_cbranch_scc1 {lql}")
    a("s_branch L_front_end")


def gen_front_split(a, stamps=False, code_lo=None, code_bytes=0):
    a.launch("ka_kernel", 160, 256, 0)
    a.launch("kb_kernel", 256, 256, FRONT_LDS)
    vm, lg = Cnt(a, "vmcnt", 63), Cnt(a, "lgkmcnt", 15)
    a.begin("ka_kernel")
    a("s_cmp_ge_u32 s2, 160\ns_cbranch_scc1 L_ka_exit")
    if stamps: stamp(a, 0)
    a.srd(4, "k"); a.srd(8, "v"); a.srd(12, "shift"); a.srd(16, "ws")
    ids(a); conv_ids(a)
    a("s_waitcnt lgkmcnt(0)")
    a.srd_fin(4, "k"); a.srd_fin(8, "v"); a.srd_fin(12, "shift"); a.srd_fin(16, "ws", KVT, S * D * 2)
    for _ in phase_a(a, vm, "sc1"):
        pass
    if stamps:
        stamp(a, 1); a("s_waitcnt vmcnt(0)"); stamp(a, 2); stamp_flush(a, 0, 3)
    a("L_ka_exit:\ns_endpgm")
    a.end("ka_kernel", 160, 102)

    vm.reset(); lg.reset()
    a.begin("kb_kernel")
    a("s_cmp_ge_u32 s2, 256\ns_cbranch_scc1 L_kb_exit")
    if stamps: stamp(a, 0)
    ids(a)
    a("v_mov_b32 v255, v0\ns_cmp_ge_u32 s21, 20\ns_cbranch_scc1 L_side")
    a.srd(40, "ssmk"); a.srd(44, "ssmd"); a.srd(16, "ws"); a.srd(36, "ws")
    conv_ids(a)
    a("s_waitcnt lgkmcnt(0)")
    a.srd_fin(40, "ssmk"); a.srd_fin(44, "ssmd"); a.srd_fin(16, "ws", KVT, S * D * 2); a.srd_fin(36, "ws", YT, S * D * 2)
    t = conv_h_load(a, vm)
    conv_h_stage(a, vm, lg, t)
    if stamps: stamp(a, 1)
    conv_main(a, vm, lg, "", "sc1", stamps)
    a("s_branch L_front_end\nL_side:")
    if stamps: stamp(a, 1)
    side_jobs(a, code_lo, code_bytes)
    a("L_front_end:")
    if stamps:
        stamp(a, 2); a("s_waitcnt vmcnt(0)"); stamp(a, 3); a("v_mov_b32 v0, v255"); stamp_flush(a, 1, 6)
    a("L_kb_exit:\ns_endpgm")
    a.end("kb_kernel", 256, 102)


if __name__ == "__main__":
    import sys, hazards
    a = Asm()
    gen_front_split(a, stamps=True)
    txt = a.render()
    open("front.s", "w").write(txt)
    for e in hazards.check(txt):
        print("HAZARD line %d -> %d need %d have %d: %s => %s" % e)
```

```python
import math
from asmlib import *
from layout import *
from gen_front import bf16r

WS, LS, OUT, QS = 4, 8, 12, 16
sW, sRB, sJH, sCB = 20, 21, 22, 23
sT = 24
sCH = 32
sTB = 42
sHS = 49
sK = 56
sHB, sWB, sXS, sXA, sFL, sM0, sINV, sEX, sEX6, sSP = 70, 71, 72, 73, 74, 75, 76, 77, 78, 79
sH, sWd = 80, 81
sYO, sNONCE, sCHN, sREP = 82, 83, 100, 3
vL, vL16, vT16, vRD, vHST, vHL, vL16B, vXST, vST, vSTX, vG1S, vOUT, vONE, vPOLL = 1, 2, 3, 4, 7, 8, 12, 13, 14, 15, 16, 17, 18, 19
vFA = 6
vTB, vXA, vWD = 6, 47, 16
vY, vXR, vEXT, vC0, vC1, vR, vQS = 20, 30, 40, 44, 45, 46, 47
vWF, vET, vACC = 48, 72, 92
vG2 = 72
RES, RING, NSLOT = 8192, 8192 + 81920, 18
DUMMY = 0x08000000
KF_LDS = 163840
SPIN = 20000
P = dict(fe_pub=204, fe_poll=234, fe_chk=246, fm_pub=260, fm_poll=20, fm_chk=38, fl_pub=40, fl_poll=122, fl_chk=140, look=4,
         names=["start", "join0", "g1end0", "g2end0", "xch", "join1", "g1end1", "g2end1"], out_flags="", x_ahead=8, x_pace=2.6, ko=8, e5_hi=282,
         wd_lo=100, wd_hi=246, wd_early=12, w2_lo=0, w2_hi=100, f_lo=4, f_pace=1.1, cap1=5.25, cap2=1.5, lead=2, lag=5, ah=6, we=4, vcost=2.5, pace2=1.0)


def R(kind, b):
    return f"{kind}[{b}:{b+3}]"


class Sched:
    def __init__(self, cap=99, lead=2, lag=4):
        self.cap, self.lead, self.lag = cap, lead, lag
        self.fixed, self.streams = [], []

    def add(self, pos, fn, cost=1):
        self.fixed.append((pos, len(self.fixed), fn, cost))

    def spread(self, lo, hi, fns):
        for i, f in enumerate(fns):
            self.add(lo + (hi - lo) * i / max(1, len(fns)), f)

    def stream(self, lo, hi, items, deadline=None, pace=0):
        tot = sum(x[1] for x in items) or 1
        acc, q, nxt = 0, [], lo
        for x in items:
            e = max(lo, x[2]) if len(x) > 2 else lo
            t = max(lo + (hi - lo) * acc / tot, e, nxt)
            q.append((t, e, deadline, x[0], x[1]))
            acc += x[1]
            nxt = t + pace * x[1]
        self.streams.append(q)

    def run(self, mfmas, pre=lambda n: 0):
        fx = sorted(self.fixed, key=lambda x: (x[0], x[1]))
        k = 0
        while k < len(fx) and fx[k][0] < 0:
            fx[k][2](); k += 1
        self.load = []
        for n, m in enumerate(mfmas):
            m()
            here = []
            while k < len(fx) and fx[k][0] < n + 1:
                here.append(fx[k]); k += 1
            used = sum(x[3] for x in here) + pre(n + 1)
            for x in here:
                if x[0] - n < 0.5:
                    x[2]()
            while True:
                c = [q for q in self.streams if q and q[0][1] <= n and q[0][0] <= n + self.lead]
                c.sort(key=lambda q: q[0][0])
                pick = None
                for q in c:
                    tgt, _, dl, _, cost = q[0]
                    left = sum(1 for _ in q)
                    if used + cost <= self.cap or used == 0 or tgt <= n - self.lag or (dl is not None and dl <= n):
                        pick = q
                        break
                if pick is None:
                    break
                it = pick.pop(0)
                it[3](); used += it[4]
            for x in here:
                if x[0] - n >= 0.5:
                    x[2]()
            self.load.append(used)
        while k < len(fx):
            fx[k][2](); k += 1
        for q in self.streams:
            while q:
                q.pop(0)[3]()


def cost_of(s):
    op = s.split()[0]
    return 2 if op[:5] in ("v_exp", "v_rcp", "v_sqr") else 0.75 if op[:2] == "s_" else 1


class KF:
    def __init__(self, a, stamps=False, stop=None, **kw):
        self.a, self.stamps, self.stop = a, stamps, stop
        self.p = dict(P); self.p.update(kw)
        self.vm, self.lg = Cnt(a, "vmcnt", 63), Cnt(a, "lgkmcnt", 15)
        self.tail = []
        self.wslots = [("v", 156 + 4 * i) for i in range(25)] + [("a", 160 + 4 * i) for i in range(24)]

    def st(self, name):
        if self.stamps and name in self.p["names"]:
            stamp(self.a, self.p["names"].index(name))

    def probes(self, S_, phase):
        for nm in self.p["names"] if self.stamps else []:
            if nm.startswith(phase + "@"):
                S_.add(float(nm.split("@")[1]), (lambda nm: (lambda: self.st(nm)))(nm))

    def arrive(self, soff, imm=0, nrep=1, wave=0):
        a = self.a
        l = a.label("sig")
        if wave is not None:
            a(f"s_cmp_lg_u32 s{sW}, {wave}\ns_cbranch_scc1 {l}")
        a(f"s_mov_b64 exec, {(1 << nrep) - 1}")
        va = ("off", "") if nrep == 1 else (f"v{vFA}", " offen")
        a(f"buffer_atomic_add v{vONE}, {va[0]}, s[{WS}:{WS+3}], {soff}{va[1]} offset:{imm} sc1")
        a(f"s_mov_b64 exec, -1\n{l}:")

    def cload(self, soff, imm, dst=vPOLL):
        return f"buffer_load_dword v{dst}, off, s[{WS}:{WS+3}], {soff} offset:{imm} sc1"

    def spin(self, soff, imm, n, done, sleep=0, dst=vPOLL):
        a = self.a
        l = a.label("spin")
        op = "ge" if isinstance(n, int) else "eq"
        a(f"""s_movk_i32 s{sSP}, {SPIN}
{l}:
{self.cload(soff, imm, dst)}
s_waitcnt vmcnt(0)
v_readfirstlane_b32 s{sT}, v{dst}
s_cmp_{op}_u32 s{sT}, {n}
s_cbranch_scc1 {done}
{"s_sleep %d" % sleep if sleep else ""}
s_sub_u32 s{sSP}, s{sSP}, 1
s_cbranch_scc0 {l}
s_branch {done}""".replace("\n\n", "\n"))

    def wait0(self, soff, imm, n, sleep=0):
        got = self.a.label("got")
        self.a(f"s_cmp_lg_u32 s{sW}, 0\ns_cbranch_scc1 {got}")
        self.spin(soff, imm, n, got, sleep)
        self.a(got + ":")

    def check(self, tok, soff, imm, n, dst=vPOLL, sleep=0):
        a = self.a
        slow, done = a.label("slow"), a.label("ok")
        op = "ge" if isinstance(n, int) else "eq"
        self.vm.wait(tok)
        a(f"v_readfirstlane_b32 s{sT}, v{dst}\ns_cmp_{op}_u32 s{sT}, {n}\ns_cbranch_scc0 {slow}\n{done}:")
        self.tail.append((slow, lambda: self.spin(soff, imm, n, done, dst=dst, sleep=sleep)))

    def gate(self, S_, soff, imm, n, p1, p2):
        tk = {}
        S_.add(p1, lambda: tk.__setitem__(0, self.vm.issue(self.cload(soff, imm))))
        S_.add(p2, lambda: self.check(tk[0], soff, imm, n))

    def signal(self, kind):
        self.arrive(f"s{sFL}", 256 * kind)

    def row_reduce(self, regs, tmp, halves=(16, 32)):
        a = self.a
        for h in halves:
            for i, r in enumerate(regs):
                a(f"v_mov_b32 v{tmp+i}, v{r}")
            a("s_nop 0" if len(regs) > 1 else "s_nop 1")
            for i, r in enumerate(regs):
                a(f"v_permlane{h}_swap_b32 v{r}, v{tmp+i}")
            for i, r in enumerate(regs):
                a(f"v_add_f32 v{r}, v{r}, v{tmp+i}")

    def moments(self, vs, vq, t):
        a = self.a
        a(f"v_mul_f32 v{vs}, s{sINV}, v{vs}\nv_mul_f32 v{t}, v{vs}, v{vs}\nv_fma_f32 v{vq}, v{vq}, s{sINV}, -v{t}\nv_max_f32 v{vq}, 0, v{vq}")
        bf16r(a, vs); bf16r(a, vq)
        a(f"v_add_f32 v{vq}, {f32(1e-5)}, v{vq}")
        bf16r(a, vq)
        a(f"v_sqrt_f32 v{vq}, v{vq}\ns_nop 0")
        bf16r(a, vq)

    def setup_regs(self):
        a = self.a
        t = sT
        a(f"""
s_lshr_b32 s{t}, s2, 3
s_and_b32 s{sJH}, s2, 1
s_bfe_u32 s{sRB}, s2, 0x20001
s_lshl_b32 s{sRB}, s{sRB}, 2
s_lshr_b32 s{t+1}, s{t}, 3
s_add_u32 s{sRB}, s{sRB}, s{t+1}
s_and_b32 s{sCB}, s{t}, 7
s_lshl_b32 s{t+1}, s{t+1}, 1
s_add_u32 s{t+1}, s{t+1}, s{sCB}
v_lshlrev_b32 v{vL16}, 4, v{vL}
v_lshlrev_b32 v{vT16}, 4, v0
v_and_b32 v40, 15, v{vL}
v_lshrrev_b32 v41, 4, v{vL}
s_lshl_b32 s{t+2}, s{sRB}, 7
s_lshl_b32 s{t+3}, s{sJH}, 6
s_add_u32 s{t+3}, s{t+3}, s{t+2}
s_lshl_b32 s{t+4}, s{sW}, 4
s_add_u32 s{t+3}, s{t+3}, s{t+4}
v_add_u32 v42, s{t+3}, v40
v_mul_u32_u24 v{vOUT}, 1280, v42
s_mul_i32 s{t+4}, s{sCB}, 160
v_lshl_add_u32 v43, v41, 3, s{t+4}
v_add_u32 v{vOUT}, v{vOUT}, v43
s_lshl_b32 s{sWB}, s{t+3}, 3
s_add_u32 s{sWB}, s{sWB}, {QST}
s_mul_i32 s{t+4}, s{sCB}, {80*4096}
s_lshl_b32 s{t+5}, s{t+3}, 1
s_add_u32 s{t+4}, s{t+4}, s{t+5}
s_add_u32 s{sYO}, s{t+4}, {YT}
s_lshl_b32 s{t+4}, s{sJH}, 3
s_add_u32 s{t+4}, s{t+4}, s{sCB}
s_mul_i32 s{t+6}, s{t+4}, 5
s_lshl_b32 s{t+7}, s{t+4}, 2
s_add_u32 s{t+7}, s{t+7}, 12
s_min_u32 s{t+6}, s{t+6}, s{t+7}
s_add_u32 s{t+6}, s{t+6}, 32
s_lshl_b32 s{sEX}, s{t+4}, 11
s_add_u32 s{sEX}, s{sEX}, {W1X}
s_lshl_b32 s{sEX6}, s{t+6}, 10
s_add_u32 s{sEX6}, s{sEX6}, {W1X}
s_mul_i32 s{sTB}, s{t+4}, 81920
s_add_u32 s{sTB}, s{sTB}, {W1P}
s_mul_i32 s{sTB+2}, s{t+6}, 40960
s_add_u32 s{sTB+2}, s{sTB+2}, {W1P}
s_lshl_b32 s{sM0}, s{sW}, 10
s_add_u32 s{sM0}, s{sM0}, {RING}
s_sub_u32 s{t+6}, s{t+1}, 10
s_cselect_b32 s{t+6}, s{t+1}, s{t+6}
s_lshl_b32 s{sCH}, s{t+6}, 12
""".replace("v40", "v60").replace("v41", "v61").replace("v42", "v62").replace("v43", "v63"))
        for c in range(1, 10):
            a(f"s_add_u32 s{sCH+c}, s{sCH+c-1}, 4096\ns_cmp_eq_u32 s{sCH+c}, 40960\ns_cselect_b32 s{sCH+c}, 0, s{sCH+c}")
        a(f"""
v_add_u32 v{vRD}, 65536, v{vL16}
v_add_u32 v{vRD+1}, 131072, v{vL16}
s_lshl_b32 s{t+4}, s{t+3}, 6
v_lshl_add_u32 v{vSTX}, v60, 3, s{t+4}
s_lshl_b32 s{t+4}, s{sCB}, 7
v_add_u32 v{vST}, s{t+4}, v{vSTX}
v_lshl_add_u32 v{vSTX}, v61, 8, v{vSTX}
v_add_u32 v{vSTX}, {STX}, v{vSTX}
v_lshrrev_b32 v63, 1, v61
v_lshlrev_b32 v63, 5, v63
v_add_u32 v63, v63, v60
s_and_b32 s{t+4}, s{sW}, 1
s_lshl_b32 s{t+4}, s{t+4}, 4
v_add_u32 v63, s{t+4}, v63
v_lshlrev_b32 v63, 4, v63
v_and_b32 v66, 1, v61
v_lshl_add_u32 v{vXST}, v66, 10, v63
s_lshr_b32 s{t+4}, s{t+3}, 5
s_mul_i32 s{t+4}, s{t+4}, 40
s_mul_i32 s{t+5}, s{sCB}, 5
s_add_u32 s{t+4}, s{t+4}, s{t+5}
s_lshl_b32 s{sXS}, s{t+4}, 10
s_lshl_b32 s{t+4}, s{sRB}, 2
s_add_u32 s{t+4}, s{t+4}, s{sW}
s_mul_i32 s{sXA}, s{t+4}, 40960
s_lshl_b32 s{sHB}, s{t+4}, 11
s_add_u32 s{sHB}, s{sHB}, {ST2_O}
v_lshrrev_b32 v66, 5, v{vL}
v_bfe_u32 v63, v{vL}, 4, 1
v_lshlrev_b32 v63, 10, v63
v_lshl_add_u32 v63, v66, 8, v63
v_lshl_add_u32 v{vHST}, v60, 4, v63
s_lshl_b32 s{sFL}, s{sRB}, 10
s_add_u32 s{sFL}, s{sFL}, {FK}
s_and_b32 s{sREP}, s2, 7
s_lshl_b32 s{sREP}, s{sREP}, 8
s_add_u32 s{sREP}, s{sREP}, {FP}
s_mov_b32 s{sINV}, {f32(1/640)}
""")
        a(f"s_lshl_b32 s{t+5}, s{sRB}, 1\ns_add_u32 s{t+5}, s{t+5}, s{sJH}\ns_mul_i32 s{t+5}, s{t+5}, 276480\ns_add_u32 s{t+5}, s{t+5}, {HF_O}")
        a(f"s_mul_i32 s{t+4}, s{sCB}, 276480\ns_add_u32 s{t+4}, s{t+4}, {W2P}\nv_add_u32 v{vWD}, s{t+4}, v{vL16}\nv_add_u32 v{vL16B}, 4096, v{vWD}\nv_add_u32 v{vXA}, s{sXA}, v{vL16}")
        for pt in range(4):
            a(f"s_add_u32 s{t+4}, s{sW}, {pt}\ns_and_b32 s{t+4}, s{t+4}, 3\ns_lshl_b32 s{t+4}, s{t+4}, 10\ns_add_u32 s{t+4}, s{t+4}, s{t+5}\nv_add_u32 v{vHL+pt}, s{t+4}, v{vL16}")
        a(f"""
s_lshl_b32 s{t+4}, s{sJH}, 3
s_add_u32 s{t+4}, s{t+4}, s{sCB}
s_lshl_b32 s{t+6}, s{t+4}, 1
s_add_u32 s{t+7}, s{t+4}, 12
s_min_u32 s{t+6}, s{t+6}, s{t+7}
s_lshl_b32 s{t+7}, s{sRB}, 1
s_lshr_b32 s{t+2}, s{sW}, 1
s_add_u32 s{t+2}, s{t+2}, s{t+7}
s_mul_i32 s{t+2}, s{t+2}, 276480
s_and_b32 s{t}, s{sW}, 1
s_lshl_b32 s{t}, s{t}, 11
s_add_u32 s{t+2}, s{t+2}, s{t}
s_add_u32 s{t+2}, s{t+2}, {HF_O}
""")
        for tt in (1, 3, 4, 5, 6):
            a(f"s_add_u32 s{sTB+tt}, s{sTB+tt-1}, 40960")
        for tt in range(7):
            if tt < 3:
                a(f"s_mul_i32 s{t}, s{t+4}, 3\ns_add_u32 s{t}, s{t}, {tt}")
            elif tt < 5:
                a(f"s_lshl_b32 s{t}, s{t+4}, 1\ns_add_u32 s{t}, s{t}, {45+tt}")
            else:
                a(f"s_add_u32 s{t}, s{t+6}, {75+tt}")
            a(f"s_and_b32 s{t+5}, s{t}, 1\ns_lshl_b32 s{t+5}, s{t+5}, 9\ns_lshr_b32 s{t}, s{t}, 1\ns_mul_i32 s{t}, s{t}, 5120\ns_add_u32 s{t}, s{t}, s{t+5}\ns_add_u32 s{sHS+tt}, s{t}, s{t+2}")
        a(f"s_cmp_ge_u32 s{t+4}, 12\ns_cselect_b32 s{sTB+6}, {DUMMY}, s{sTB+6}\ns_cselect_b32 s{sHS+6}, {DUMMY}, s{sHS+6}")
        a(f"s_mul_i32 s{t}, s{t+1}, 43\ns_lshr_b32 s{t}, s{t}, 8\ns_mul_i32 s{t}, s{t}, 6\ns_sub_u32 s{t}, s{t+1}, s{t}\ns_mul_i32 s{t+2}, s{sW}, 6")
        for i in range(6):
            a(f"s_add_u32 s{t+5}, s{t}, s{t+2}\ns_mul_i32 s{sK+i}, s{t+5}, 5120\ns_add_u32 s{t}, s{t}, 1\ns_cmp_eq_u32 s{t}, 6\ns_cselect_b32 s{t}, 0, s{t}")
        a(f"s_lshl_b32 s{t+2}, s{sW}, 2\ns_add_u32 s{t+2}, s{t+2}, 24")
        for i in range(4):
            a(f"s_add_u32 s{t}, s{t+1}, {i}\ns_and_b32 s{t}, s{t}, 3\ns_add_u32 s{t}, s{t}, s{t+2}\ns_mul_i32 s{sK+6+i}, s{t}, 5120")
        a(f"s_lshl_b32 s{t}, s{sW}, 2\ns_min_u32 s{t}, s{t}, 11\ns_add_u32 s{t}, s{t}, 40\ns_mul_i32 s{sK+10}, s{t}, 5120")
        for i in range(11, 14):
            a(f"s_add_u32 s{sK+i}, s{sK+i-1}, 5120")
        a(f"s_cmp_ge_u32 s{sW}, 2\ns_cselect_b32 s{sK+13}, {DUMMY}, s{sK+13}")

    def res_loads(self):
        a, vm = self.a, self.vm
        L = [(lambda d: (lambda: vm.issue(f"buffer_load_dwordx2 v[{vXR+2*d}:{vXR+2*d+1}], v{vOUT}, s[{QS}:{QS+3}], 0 offen offset:{32*d}")))(d) for d in range(5)]
        L.append(lambda: vm.issue(f"v_and_b32 v{vC0}, 15, v{vL}\nv_lshlrev_b32 v{vC0}, 3, v{vC0}\nbuffer_load_dwordx2 v[{vC0}:{vC1}], v{vC0}, s[{WS}:{WS+3}], s{sWB} offen sc1"))

        def dma(lds, so, pre=""):
            def f():
                a(f"s_sub_u32 m0, s{sM0}, {RING-lds}\n" + (pre or "s_nop 0"))
                vm.issue(f"buffer_load_dwordx4 v{vT16}, s[{WS}:{WS+3}], {so} offen sc1 lds")
            return f
        for c in range(10):
            for t in range(2):
                L.append(dma(RES + 8192 * c + 4096 * t, f"s{sT+5}", f"s_add_u32 s{sT+5}, s{sTB+t}, s{sCH+c}"))

        def ext01():
            l = a.label("ex")
            a(f"s_cmp_ge_u32 s{sW}, 2\ns_cbranch_scc1 {l}\ns_sub_u32 m0, s{sM0}, {RING}\ns_nop 0")
            a(f"buffer_load_dwordx4 v{vT16}, s[{WS}:{WS+3}], s{sEX} offen sc1 lds\n{l}:")
        return L[:6] + [ext01] + L[6:]

    def poison_stx(self):
        a, P_ = self.a, vET + 8
        a(f"v_mov_b32 v{P_}, -1\nv_mov_b32 v{P_+1}, -1\ns_mov_b32 s{sT+6}, {STX}\ns_mov_b64 exec, 0xffff")
        self.vm.issue(f"buffer_store_dwordx2 v[{P_}:{P_+1}], v{vST}, s[{WS}:{WS+3}], s{sT+6} offen sc1")
        a("s_mov_b64 exec, -1")

    def swap_pairs(self, base):
        return [f"v_permlane16_swap_b32 v{base+4*q+i}, v{base+4*q+2+i}" for q in range(3) for i in range(2)]

    def res_shadow(self):
        a = self.a
        l = a.label("nores")
        a(f"s_cmp_eq_u32 s{sW}, 0\ns_cbranch_scc1 {l}")
        pieces = [(RES + 8192 * c + 4096 * t, f"s_add_u32 s{{d}}, s{sTB+t}, s{sCH+c}") for c in range(10) for t in range(2)]
        pieces += [(0, f"s_mov_b32 s{{d}}, s{sEX}")]
        for q in range(0, 21, 3):
            for w in range(1, 4):
                lds, code = pieces[q + w - 1]
                a(code.format(d=sT + w) + f"\ns_mov_b32 s{sT+3+w}, {lds}")
            a(f"s_cmp_eq_u32 s{sW}, 2\ns_cselect_b32 s{sT+1}, s{sT+2}, s{sT+1}\ns_cselect_b32 s{sT+4}, s{sT+5}, s{sT+4}")
            a(f"s_cmp_eq_u32 s{sW}, 3\ns_cselect_b32 s{sT+1}, s{sT+3}, s{sT+1}\ns_cselect_b32 s{sT+4}, s{sT+6}, s{sT+4}")
            a(f"s_mov_b32 m0, s{sT+4}\ns_nop 0")
            for i in range(4):
                if q == 18 and i == 2:
                    a(f"s_cbranch_scc1 {l}")
                a(f"buffer_load_dwordx4 v{vL16}, s[{WS}:{WS+3}], s{sT+1} offen offset:{1024*i} sc1 lds")
        a(l + ":")

    def w1_shadow(self):
        a = self.a
        l = a.label("nosh")
        a(f"s_cmp_eq_u32 s{sW}, 0\ns_cbranch_scc1 {l}")
        for q in range(4):
            if q < 3:
                a(f"s_cmp_eq_u32 s{sW}, 2\ns_cselect_b32 s{sT+1}, s{sCH+3*q+1}, s{sCH+3*q}\ns_cmp_eq_u32 s{sW}, 3\ns_cselect_b32 s{sT+1}, s{sCH+3*q+2}, s{sT+1}")
            else:
                a(f"s_cmp_lg_u32 s{sW}, 1\ns_cbranch_scc1 {l}\ns_mov_b32 s{sT+1}, s{sCH+9}")
            a(f"s_lshl_b32 s{sT+2}, s{sW}, 12\ns_add_u32 m0, s{sT+2}, {RING+4096*(3*q-1)}\ns_add_u32 s{sT+1}, s{sT+1}, s{sTB+2}")
            for i in range(4):
                a(f"buffer_load_dwordx4 v{vL16}, s[{WS}:{WS+3}], s{sT+1} offen offset:{1024*i} sc1 lds")
        a(l + ":")

    def e1(self):
        a, vm, lg = self.a, self.vm, self.lg
        a(f"""v_lshrrev_b32 v60, 3, v0
v_and_b32 v61, 7, v0
v_lshlrev_b32 v62, 12, v60
v_lshl_add_u32 v62, v61, 4, v62
s_lshl_b32 s{sT+2}, s{sW}, 5
s_sub_u32 s{sT+2}, s{sYO}, s{sT+2}
s_add_u32 s{sT}, s{sT+2}, {32*4096}
s_add_u32 s{sT+1}, s{sT+2}, {64*4096}
s_cmp_ge_u32 s{sW}, 2
s_cselect_b32 s{sT+1}, {DUMMY}, s{sT+1}""")
        tk = [vm.issue(f"buffer_load_dwordx4 {R('v', 48+4*i)}, v62, s[{WS}:{WS+3}], s{(sT+2, sT, sT+1)[i]} offen sc1") for i in range(3)]
        a(f"""v_mul_u32_u24 v60, 160, v60
v_lshl_add_u32 v60, v61, 4, v60
v_add_u32 v60, {RING}, v60
v_lshrrev_b32 v61, 2, v{vL}
v_mul_u32_u24 v61, 160, v61
v_and_b32 v62, 3, v{vL}
v_lshl_add_u32 v61, v62, 3, v61
s_lshl_b32 s{sT}, s{sW}, 5
s_add_u32 s{sT}, s{sT}, {RING}
v_add_u32 v61, s{sT}, v61""")
        XV = vG2
        for d in range(10):
            a(f"v_lshlrev_b32 v{XV+2*d}, 16, v{vXR+d}\nv_and_b32 v{XV+2*d+1}, 0xffff0000, v{vXR+d}")
        for i in range(3):
            vm.wait(tk[i])
            lg.issue(f"ds_write_b128 v60, {R('v', 48+4*i)} offset:{5120*i}")
        lg.all()
        a("s_barrier")
        for d in range(5):
            lg.issue(f"ds_read_b64_tr_b16 v[{vY+2*d}:{vY+2*d+1}], v61 offset:{2560*d}")
        lg.all()

    def e_post(self, layer):
        a, vm = self.a, self.vm
        XV, T = vG2, vG2 + 20
        self.st("epost%d" % layer)
        a(f"v_mul_f32 v{vR}, v{vC0}, v{vC1}\nv_mov_b32 v{T+4}, 0\nv_mov_b32 v{T+5}, 0")
        for d in range(10):
            x0, x1 = XV + 2 * d, XV + 2 * d + 1
            a(f"""v_lshlrev_b32 v{T}, 16, v{vY+d}
v_and_b32 v{T+1}, 0xffff0000, v{vY+d}
v_fma_f32 v{T+2}, v{x0}, v{vC1}, -v{vR}
v_fma_f32 v{T+3}, v{x1}, v{vC1}, -v{vR}
v_fmac_f32 v{x0}, v{T+2}, v{T}
v_fmac_f32 v{x1}, v{T+3}, v{T+1}
v_cvt_pk_bf16_f32 v{vXR+d}, v{x0}, v{x1}""")
            if d in (3, 7, 9):
                q = d // 4
                if q == 2:
                    a(f"s_add_u32 s{sT}, s{sXS}, 4096")
                a("s_nop 1\n" + "\n".join(self.swap_pairs(vXR)[2 * q:2 * q + 2]))
                if q == 2:
                    a("s_mov_b32 exec_lo, 0xffff\ns_mov_b32 exec_hi, 0xffff")
                so = f"s{sXS} offen offset:{2048*q}" if q < 2 else f"s{sT} offen"
                vm.issue(f"buffer_store_dwordx4 {R('v', vXR+4*q)}, v{vXST}, s[{LS}:{LS+3}], {so} sc1")
                if q == 2:
                    a("s_mov_b64 exec, -1")
        for d in range(20):
            a(f"v_add_f32 v{T+4}, v{T+4}, v{XV+d}\nv_fmac_f32 v{T+5}, v{XV+d}, v{XV+d}")
        self.row_reduce([T + 4, T + 5], T)
        a(f"s_mov_b32 s{sT}, {ST2_O}\ns_mov_b64 exec, 0xffff")
        tok = vm.issue(f"buffer_store_dwordx2 v[{T+4}:{T+5}], v{vST}, s[{LS}:{LS+3}], s{sT} offen sc1")
        a("s_mov_b64 exec, -1")
        self.st("xst%d" % layer)
        a("s_waitcnt vmcnt(0)\ns_barrier")
        self.st("bar0%d" % layer)
        self.signal(0)
        self.w1_shadow()
        self.wait0(f"s{sFL}", 0, 16)
        a("s_barrier")
        vm.reset()
        self.st("join%d" % layer)

    def g1(self, layer):
        a, vm, lg, p = self.a, self.vm, self.lg, self.p
        S_ = Sched(p["cap1"], p["lead"], p["lag"])
        KO = p["ko"]
        seq = [(t, c, i) for c in range(KO) for i in range(4) for t in range(3)]
        for t in range(3):
            seq += [(t, c, i) for c in range(KO, 10) for i in range(4)] + [(t, None, None)]
        for t in range(3, 7):
            seq += [(t, c, i) for c in range(10) for i in range(4)] + [(t, None, None)]
        N = len(seq)
        fill_of = lambda t, c: -1 if t < 2 else 10 * (t - 2) + c
        AH, WE, VC = p["ah"], p["we"], p["vcost"]
        WR = [vWF + 4 * i for i in range(6)] + [vET + 12, vET + 16]
        wf = lambda n: R("v", WR[n % 8])
        xt, rt, ft = {}, {}, {}
        em = lambda s: ((lambda: a(s)), cost_of(s))

        def xload(k):
            c, i = divmod(k, 4)
            return [(lambda: xt.__setitem__(k, vm.issue(f"buffer_load_dwordx4 {R('a', 4*k)}, v{vXA}, s[{LS}:{LS+3}], s{sCH+c} offen offset:{1024*i} sc1")), VC)]

        def rd(n):
            def f():
                t, c, i = seq[n]
                if c is None:
                    a_ = f"v{vL16} offset:{1024*t}"
                else:
                    idx = fill_of(t, c)
                    assert idx < 10 or idx in cert, (n, idx)
                    off = (RES + 8192 * c + 4096 * t if t < 2 else RING + (idx % NSLOT) * 4096) + 1024 * i
                    a_ = f"v{(vL16, vRD, vRD + 1)[off // 65536]} offset:{off % 65536}"
                rt[n] = lg.issue(f"ds_read_b128 {wf(n)}, {a_}")
            return f

        bars = [47, 12 * KO - 1, 122 - AH, 142, 163, 183, p["fe_pub"], 224, 240, p["fm_pub"]]
        last_use = {}
        for n, (t, c, i) in enumerate(seq):
            if c is not None:
                last_use[fill_of(t, c)] = n

        def fill(idx):
            t, c = 2 + idx // 10, idx % 10
            e = 0 if idx < NSLOT else min(b for b in bars if b >= last_use[idx - NSLOT]) + 1
            L = [em(f"v_add_u32 v{vTB}, s{sTB+t}, v{vT16}")] if c == 0 else []
            return L + [em(f"s_add_u32 m0, s{sM0}, {(idx % NSLOT) * 4096}") + (e,),
                        (lambda: ft.__setitem__(idx, vm.issue(f"s_nop 0\nbuffer_load_dwordx4 v{vTB}, s[{WS}:{WS+3}], s{sCH+c} offen sc1 lds" if a.text[-1].strip().startswith("s_add_u32 m0") else
                                                              f"buffer_load_dwordx4 v{vTB}, s[{WS}:{WS+3}], s{sCH+c} offen sc1 lds")), VC, e)]

        cert, est = set(), {}

        def bar(k):
            def f():
                nxt = bars[k + 1] if k + 1 < len(bars) else N
                need = {fill_of(*seq[n][:2]) for n in range(min(N, nxt + AH + 1)) if seq[n][1] is not None}
                need = [i for i in need if i >= 10]
                if need:
                    vm.wait(max(ft[i] for i in need))
                if bars[k] == p["fe_pub"]:
                    vm.wait(est[2])
                if bars[k] == p["fm_pub"]:
                    vm.wait(est[4])
                a("s_barrier")
                cert.update(need)
                if bars[k] == p["fe_pub"]:
                    self.signal(1)
                if bars[k] == p["fm_pub"]:
                    self.signal(3)
            return f

        def mf(n):
            def f():
                t, c, i = seq[n]
                acc = vACC + 16 * (t % 4 if t < 4 else t - 4)
                if n % WE == 0:
                    lg.wait(rt[min(n + WE - 1, N - 1)])
                lg.wait(rt[n])
                if c is None:
                    b = R("v", vEXT)
                else:
                    vm.wait(xt[4 * c + i])
                    b = R("a", 16 * c + 4 * i)
                cin = "0" if (c == 0 and i == 0) else f"v[{acc}:{acc+15}]"
                a(f"v_mfma_f32_32x32x16_bf16 v[{acc}:{acc+15}], {wf(n)}, {b}, {cin}")
            return f

        def epi(t):
            acc = vACC + 16 * (t % 4 if t < 4 else t - 4)
            o = vET + 4 + 4 * (t & 1)
            L = []
            for e in range(0, 8, 2):
                g0, g1_, u0, u1, t0, t1 = acc + e, acc + e + 1, acc + 8 + e, acc + 9 + e, vET + (e & 2), vET + (e & 2) + 1
                L += [f"v_mul_f32 v{t0}, v{g0}, v{g0}", f"v_mul_f32 v{t1}, v{g1_}, v{g1_}",
                      f"v_fma_f32 v{t0}, v{t0}, v{vC1}, v{vC0}", f"v_fma_f32 v{t1}, v{t1}, v{vC1}, v{vC0}",
                      f"v_mul_f32 v{t0}, v{t0}, v{g0}", f"v_mul_f32 v{t1}, v{t1}, v{g1_}",
                      f"v_exp_f32 v{t0}, v{t0}", f"v_exp_f32 v{t1}, v{t1}",
                      f"v_mul_f32 v{u0}, v{g0}, v{u0}",
                      f"v_fma_f32 v{t0}, v{t0}, v{vR}, v{vR}", f"v_fma_f32 v{t1}, v{t1}, v{vR}, v{vR}",
                      f"v_rcp_f32 v{t0}, v{t0}", f"v_rcp_f32 v{t1}, v{t1}",
                      f"v_mul_f32 v{u1}, v{g1_}, v{u1}",
                      f"v_mul_f32 v{u0}, v{u0}, v{t0}", f"v_mul_f32 v{u1}, v{u1}, v{t1}",
                      f"v_cvt_pk_bf16_f32 v{o + e // 2}, v{u0}, v{u1}"]

            def store():
                est[t] = vm.issue(f"buffer_store_dwordx4 {R('v', o)}, v{vHST}, s[{LS}:{LS+3}], s{sHS+t} offen sc1")
            return [em(s) for s in L] + [(store, VC)]

        T = vET
        for k in range(p["x_ahead"]):
            for f in xload(k):
                f[0]()
        a(f"v_and_b32 v{T+8}, 15, v{vL}\nv_lshlrev_b32 v{T+8}, 3, v{T+8}\nv_lshrrev_b32 v{T+9}, 5, v{vL}\nv_lshl_add_u32 v{T+8}, v{T+9}, 9, v{T+8}\nv_bfe_u32 v{T+9}, v{vL}, 4, 1\nv_lshl_add_u32 v{T+8}, v{T+9}, 10, v{T+8}")
        ts = [vm.issue(f"buffer_load_dwordx2 v[{T+2*h}:{T+2*h+1}], v{T+8}, s[{LS}:{LS+3}], s{sHB} offen offset:{128*h} sc1") for h in range(4)]
        vm.wait(xt[0])
        a("s_barrier")
        for n in range(AH):
            rd(n)()

        def stats():
            a(f"v_add_f32 v{T}, v{T}, v{T+2}\nv_add_f32 v{T+1}, v{T+1}, v{T+3}\nv_add_f32 v{T+4}, v{T+4}, v{T+6}\nv_add_f32 v{T+5}, v{T+5}, v{T+7}")
            a(f"v_add_f32 v{T}, v{T}, v{T+4}\nv_add_f32 v{T+1}, v{T+1}, v{T+5}")
            self.row_reduce([T, T + 1], T + 2, halves=(32,))
            self.moments(T, T + 1, T + 2)
            c0 = -2 * math.log2(math.e) * math.sqrt(2 / math.pi)
            a(f"""v_rcp_f32 v{T+2}, v{T+1}
v_mul_f32 v{vR}, v{T+1}, v{T+1}
v_xor_b32 v{T}, 0x80000000, v{T}
v_mul_f32 v{vC0}, {f32(c0)}, v{T+2}
v_mul_f32 v{T+3}, v{T+2}, v{T+2}
v_lshrrev_b32 v{T+4}, 16, v{T}
v_mul_f32 v{T+3}, v{T+3}, v{T+2}
v_or_b32 v{T}, v{T}, v{T+4}
v_mul_f32 v{vC1}, {f32(c0*0.044715)}, v{T+3}
v_mov_b32 v{vEXT}, v{T}
v_mov_b32 v{vEXT+1}, v{T+4}
v_mov_b32 v{vEXT+2}, v{T}
v_mov_b32 v{vEXT+3}, v{T+4}""")
        cut = len(a.text)
        stats()
        lines = a.text[cut:]; del a.text[cut:]
        S_.stream(2, 80, [em(x) for x in self.swap_pairs(vXR)] + [(lambda: vm.wait(ts[3]), 1, 20)] + [em(x.strip()) for x in lines], deadline=12 * KO - 4)

        if layer == 0:
            def ext_rest():
                l = a.label("ex")
                a(f"s_sub_u32 m0, s{sM0}, {RING-2048}\ns_nop 0")
                vm.issue(f"buffer_load_dwordx4 v{vT16}, s[{WS}:{WS+3}], s{sEX6} offen sc1 lds")
                a(f"s_cmp_lg_u32 s{sW}, 0\ns_cbranch_scc1 {l}\ns_add_u32 s{sT+5}, s{sEX6}, 4096\ns_cmp_eq_u32 s{sTB+6}, {DUMMY}\ns_cselect_b32 s{sT+5}, {DUMMY}, s{sT+5}\ns_movk_i32 m0, 6144\ns_nop 0")
                a(f"buffer_load_dwordx4 v{vL16}, s[{WS}:{WS+3}], s{sT+5} offen sc1 lds\n{l}:")
            S_.add(1.5, ext_rest, 6)
            S_.add(100.6, self.poison_stx, 6)

        for k in range(p["x_ahead"], 40):
            for f, c in xload(k):
                S_.add(int(p["x_pace"] * (k - p["x_ahead"])) + 0.2, f, c)
        for n in range(AH, N):
            S_.add(n - AH + 0.1, rd(n))
        for k, b in enumerate(bars):
            S_.add(b + 0.6, bar(k), 2)
        fl = lambda lo, hi: [x for r in range(lo, hi) for x in fill(r)]
        S_.stream(p["f_lo"], p["f_lo"] + 1, fl(10, 50), pace=p["f_pace"])
        E = []
        e0 = 12 * KO + 4 * (10 - KO) + 4
        w = (241 - e0) / 5
        for t in range(6):
            lo, hi = (e0 + w * t, e0 + w * (t + 1)) if t < 5 else (248, p["e5_hi"])
            S_.stream(int(lo), hi, epi(t), deadline=(160, 200, p["fe_pub"] - 8, 244, p["fm_pub"] - 8, None)[t])
        if layer == 0:
            self.wt = {}
            self.gate(S_, f"s{sREP}", FP3 - FP, 72, p["wd_lo"] - 20.4, p["wd_lo"] - 0.4)
            S_.stream(p["wd_lo"], p["wd_hi"], [x for k in range(49) for x in self.wload(k, self.wslots[k])])

        self.gate(S_, f"s{sFL}", 256, 16, p["fe_poll"] + 0.6, p["fe_chk"] + 0.6)
        self.ht = {}
        self.free = [("a", 4 * k) for k in range(19)]
        L = []
        for k in range(16):
            L += [x + (247 + k,) for x in self.hload(k // 4, k % 4)]
        for k in range(49, 49 + p["wd_early"]):
            L += [x + (247 + 19 + k - 49,) for x in self.wload(k, ("a", 76 + 4 * (k - 49)))]
        S_.stream(p["fe_chk"] + 1, N, L)
        self.probes(S_, "g1%d" % layer)
        S_.run([mf(n) for n in range(N)], pre=lambda n: 0.75 if n % WE == 0 else 0)
        self.load1 = S_.load
        for f in epi(6):
            f[0]()
        self.last_store = est[6]

    def wload(self, k, slot):
        s, d = divmod(k, 5)
        va = f"v{vWD}" if d < 4 else f"v{vL16B}"
        return [(lambda: self.wt.__setitem__(k, (self.vm.issue(f"buffer_load_dwordx4 {R(*slot)}, {va}, s[{WS}:{WS+3}], s{sK+s} offen offset:{1024*(d%4)} sc1"), slot)), self.p["vcost"])]

    def hload(self, s, pt):
        def f():
            slot = self.free.pop(0)
            self.ht[(s, pt)] = (self.vm.issue(f"buffer_load_dwordx4 {R(*slot)}, v{vHL+pt}, s[{LS}:{LS+3}], s{sK+s} offen sc1"), slot)
        return [(f, self.p["vcost"])]

    def g2(self, layer):
        a, vm, lg, p = self.a, self.vm, self.lg, self.p
        if layer == 1:
            self.wt.update({k: (None, self.wslots[k]) for k in range(49)})
        self.free += [("v", vWF + 4 * i) for i in range(5)]
        seq = [(s, pt, d) for s in range(12) for pt in range(4) for d in range(5)]
        seq += [(s, pt, d) for pt in (1, 2, 3, 0) for s in (12, 13) for d in range(5)]
        N = len(seq)
        S_ = Sched(p["cap2"], 1, 6)
        L = []
        for s in range(4, 14):
            e = p["fl_chk"] + 1 if s >= 10 else p["fm_chk"] + 1 if s >= 6 else 0
            e = max(e, 20 * (s - p["look"]))
            L += [x + (e,) for pt in range(4) for x in self.hload(s, pt)]
        S_.stream(0, 20 * (14 - p["look"]), L, pace=p["pace2"])
        S_.stream(p["w2_lo"], p["w2_hi"], [x for k in range(49 + p["wd_early"], 70) for x in self.wload(k, ("a", 76 + 4 * (k - 49)))])

        def pub():
            vm.wait(self.last_store)
            a("s_barrier")
            self.signal(2)
        S_.add(p["fl_pub"] + 0.2, pub)
        self.gate(S_, f"s{sFL}", 768, 16, p["fm_poll"] + 0.2, p["fm_chk"] + 0.2)
        self.gate(S_, f"s{sFL}", 512, 16, p["fl_poll"] + 0.2, p["fl_chk"] + 0.2)
        vA = vWF + 20

        def addr():
            for pt in range(1, 4):
                a(f"s_add_u32 s{sT}, s{sW}, {pt}\ns_and_b32 s{sT}, s{sT}, 3\ns_mul_i32 s{sT}, s{sT}, 15360\ns_add_u32 s{sT}, s{sT}, {RING + 5120 * (pt - 1)}\nv_add_u32 v{vA+pt}, s{sT}, v{vL16}")
            a(f"s_mul_i32 s{sT}, s{sW}, 15360\ns_add_u32 s{sT}, s{sT}, {RING}\nv_add_u32 v{vA}, s{sT}, v{vL16}")
        S_.add(200.2, addr)
        for q, pt in enumerate((1, 2, 3)):
            S_.spread(240 + 10 * q + 13.2, 240 + 10 * q + 22,
                      [(lambda pt, d: (lambda: lg.issue(f"ds_write_b128 v{vA+pt}, {R('v', vG2 + 20 * pt + 4 * d)} offset:{1024*d}")))(pt, d) for d in range(5)])

        def mf(n):
            def f():
                s, pt, d = seq[n]
                wtok, wslot = self.wt[5 * s + d]
                htok, hslot = self.ht[(s, pt)]
                vm.wait(wtok); vm.wait(htok)
                acc = vG2 + 20 * pt + 4 * d
                cin = "0" if s == 0 else R("v", acc)
                a(f"v_mfma_f32_16x16x32_bf16 {R('v', acc)}, {R(*wslot)}, {R(*hslot)}, {cin}")
                if d == 4:
                    self.free.append(hslot)
            return f
        self.probes(S_, "g2%d" % layer)
        S_.run([mf(n) for n in range(N)])
        lg.all()
        self.st("g2end%d" % layer)
        a("s_barrier")
        tr = []
        for q in range(3):
            for d in range(5):
                tr.append(lg.issue(f"ds_read_b128 {R('v', vG2 + 20 * (q + 1) + 4 * d)}, v{vA} offset:{5120*q+1024*d}"))
        XV = vG2
        for d in range(10):
            a(f"v_lshlrev_b32 v{vWF}, 16, v{vXR+d}\nv_and_b32 v{vWF+1}, 0xffff0000, v{vXR+d}\nv_add_f32 v{XV+2*d}, v{XV+2*d}, v{vWF}\nv_add_f32 v{XV+2*d+1}, v{XV+2*d+1}, v{vWF+1}")
        for q in range(3):
            for d in range(5):
                lg.wait(tr[5 * q + d])
                for r in range(4):
                    a(f"v_add_f32 v{XV+4*d+r}, v{XV+4*d+r}, v{XV+20*(q+1)+4*d+r}")

    def exchange(self):
        a, vm = self.a, self.vm
        XV, T = vG2, vG2 + 20
        self.st("red")
        a(f"v_mov_b32 v{T+4}, 0\nv_mov_b32 v{T+5}, 0")
        for d in range(20):
            a(f"v_add_f32 v{T+4}, v{T+4}, v{XV+d}\nv_fmac_f32 v{T+5}, v{XV+d}, v{XV+d}")
        self.row_reduce([T + 4, T + 5], T)
        a(f"s_mov_b32 s{sT}, {STX}\ns_mov_b64 exec, 0xffff")
        a(f"buffer_store_dwordx2 v[{T+4}:{T+5}], v{vST}, s[{WS}:{WS+3}], s{sT} offen sc1")
        l, done = a.label("xch"), a.label("xok")
        a("s_mov_b64 exec, -1")
        self.st("pub")
        a(f"""s_movk_i32 s{sSP}, {SPIN}
{l}:
buffer_load_dwordx2 v[{T}:{T+1}], v{vSTX}, s[{WS}:{WS+3}], 0 offen sc1
buffer_load_dwordx2 v[{T+2}:{T+3}], v{vSTX}, s[{WS}:{WS+3}], 0 offen offset:128 sc1
s_waitcnt vmcnt(0)
v_max_u32 v{T+4}, v{T+1}, v{T+3}
v_cmp_eq_u32 vcc, -1, v{T+4}
s_and_b64 vcc, exec, vcc
s_cbranch_vccz {done}
s_sub_u32 s{sSP}, s{sSP}, 1
s_cbranch_scc0 {l}
{done}:
v_add_f32 v{T}, v{T}, v{T+2}
v_add_f32 v{T+1}, v{T+1}, v{T+3}""")
        vm.reset()
        self.st("polled")
        self.row_reduce([T, T + 1], T + 2)
        self.moments(T, T + 1, T + 2)
        a(f"v_rcp_f32 v{vC1}, v{T+1}\nv_mov_b32 v{vC0}, v{T}")
        a(f"s_add_u32 s{LS}, s{LS}, {LSTEP}\ns_addc_u32 s{LS+1}, s{LS+1}, 0\ns_add_u32 s{sFL}, s{sFL}, 16384")

    def final(self):
        a = self.a
        XV, O = vG2, vWF
        a(f"v_lshrrev_b32 v{O+12}, 4, v{vL}\nv_and_b32 v{O+13}, 1, v{O+12}\nv_mul_u32_u24 v{O+13}, 24, v{O+13}\nv_add_u32 v{vOUT}, v{vOUT}, v{O+13}")
        for q in range(3):
            for d in range(4 if q < 2 else 2):
                a(f"v_cvt_pk_bf16_f32 v{O+4*q+d}, v{XV+8*q+2*d}, v{XV+8*q+2*d+1}")
            a("s_nop 1\n" + "\n".join(self.swap_pairs(O)[2 * q:2 * q + 2]))
            if q == 2:
                a("s_mov_b32 exec_lo, 0xffff\ns_mov_b32 exec_hi, 0xffff")
            a(f"buffer_store_dwordx4 {R('v', O+4*q)}, v{vOUT}, s[{OUT}:{OUT+3}], 0 offen offset:{64*q} {self.p['out_flags']}")
        a("s_mov_b64 exec, -1")

    def body(self):
        for layer in range(2):
            self.e_post(layer)
            self.g1(layer)
            self.st("g1end%d" % layer)
            self.g2(layer)
            if layer == 0:
                self.exchange()
                self.st("xch")
        self.final()
        self.st("end")

    def tails(self):
        for slow, fn in self.tail:
            self.a(slow + ":")
            fn()
```

```python
import re, sys

REG = re.compile(r"\b([vas])\[(\d+):(\d+)\]|\b([vas])(\d+)\b|\b(vcc|exec|m0)\b")
TRANS = ("v_exp_f32", "v_log_f32", "v_rcp_f32", "v_rsq_f32", "v_sqrt_f32", "v_sin_f32", "v_cos_f32")


def regs(op):
    out = set()
    for m in REG.finditer(op):
        if m.group(1):
            out |= {(m.group(1), i) for i in range(int(m.group(2)), int(m.group(3)) + 1)}
        elif m.group(4):
            out.add((m.group(4), int(m.group(5))))
        else:
            out.add((m.group(6), 0))
    return out


class I:
    def __init__(self, text, line):
        self.text, self.line = text, line
        t = text.split(";")[0].strip()
        p = t.split(None, 1)
        self.op = p[0]
        ops = [x.strip() for x in re.split(r",(?![^\[]*\])", p[1])] if len(p) > 1 else []
        self.ops = ops
        o = self.op
        self.mfma = o.startswith("v_mfma")
        self.valu = o.startswith("v_") and not self.mfma
        self.salu = o.startswith("s_")
        self.vmem = o.startswith(("buffer_", "global_"))
        self.ds = o.startswith("ds_")
        self.trans = o.replace("_e32", "").replace("_e64", "") in TRANS
        self.dpp = "dpp" in o or "row_" in t or "wave_sh" in t or "quad_perm" in t
        self.perm = o.startswith("v_permlane")
        self.dot = o.startswith("v_dot")
        self.w, self.r = set(), set()
        self.srcc = set()
        self.stdata = set()
        self.states = 1
        if o == "s_nop":
            self.states = int(ops[0], 0) + 1
        if self.mfma:
            self.w = regs(ops[0]); self.ab = regs(ops[1]) | regs(ops[2]); self.srcc = regs(ops[3]); self.r = self.ab | self.srcc
            self.passes = 8 if "32x32x16" in o else 4
        elif self.valu:
            if o.startswith("v_cmp"):
                self.w = regs(ops[0]); self.r = set().union(*[regs(x) for x in ops[1:]])
            elif self.perm:
                self.w = regs(ops[0]) | regs(ops[1]); self.r = set(self.w)
            else:
                self.w = regs(ops[0]); self.r = set().union(*[regs(x) for x in ops[1:]]) if len(ops) > 1 else set()
                if o.startswith(("v_fmac", "v_dot2c", "v_writelane")) or self.dpp:
                    self.r |= self.w
                if "_co_" in o:
                    self.w |= regs(ops[1])
        elif self.vmem:
            lds = " lds" in t
            if "_load" in o and not lds:
                self.w = regs(ops[0]); self.r = set().union(*[regs(x) for x in ops[1:]])
            elif lds:
                self.r = set().union(*[regs(x) for x in ops]) | {("m0", 0)}
                self.lds = True
            elif o.startswith("buffer_"):
                self.r = set().union(*[regs(x) for x in ops])
                if "x3" in o or "x4" in o:
                    self.stdata = regs(ops[0])
            else:
                self.r = set().union(*[regs(x) for x in ops])
                if "x3" in o or "x4" in o:
                    self.stdata = regs(ops[1])
        elif self.ds:
            if "read" in o or "permute" in o or "swizzle" in o:
                self.w = regs(ops[0]); self.r = set().union(*[regs(x) for x in ops[1:]])
            else:
                self.r = set().union(*[regs(x) for x in ops])
        elif self.salu:
            if o.startswith(("s_cmp", "s_cbranch", "s_branch", "s_waitcnt", "s_barrier", "s_nop", "s_endpgm", "s_sleep", "s_setprio", "s_bitcmp")):
                self.r = set().union(*[regs(x) for x in ops]) if ops else set()
            else:
                self.w = regs(ops[0]); self.r = set().union(*[regs(x) for x in ops[1:]]) if len(ops) > 1 else set()
                if "saveexec" in o:
                    self.w.add(("exec", 0))


def need(p, c):
    n = 0
    vec = lambda s: {x for x in s if x[0] in "va"}
    sg = lambda s: {x for x in s if x[0] in ("s", "vcc")}
    if p.mfma:
        d = p.w
        k = {4: 0, 8: 1}[p.passes]
        if c.mfma:
            if c.ab & d:
                n = max(n, (8, 12)[k])
            if c.srcc & d and not (c.srcc == d and c.passes == p.passes):
                n = max(n, (6, 10)[k])
            if c.w & d and not (c.srcc == d):
                n = max(n, (6, 10)[k])
        elif (c.valu and (c.r | c.w) & d) or ((c.vmem or c.ds) and (c.r | c.w) & d):
            n = max(n, (8, 12)[k])
        if c.valu and c.w & p.srcc:
            n = max(n, (3, 7)[k])
    if p.valu:
        if c.mfma and c.r & vec(p.w):
            n = max(n, 2)
        if p.trans and c.valu and not c.trans and c.r & p.w:
            n = max(n, 1)
        if c.valu and (c.dpp or c.perm) and c.r & vec(p.w):
            n = max(n, 2)
        if c.op.startswith(("v_readlane", "v_readfirstlane")) and c.r & vec(p.w):
            n = max(n, 1)
        if c.vmem and c.r & sg(p.w):
            n = max(n, 5)
        if c.valu and c.r & sg(p.w):
            n = max(n, 2)
        if p.dot and c.valu and (c.r | c.w) & p.w and not (c.op == p.op and not (set().union(*[regs(x) for x in c.ops[1:3]]) & p.w)):
            n = max(n, 3)
        if ("exec", 0) in p.w and (c.mfma or c.dpp or c.perm):
            n = max(n, 5)
    if p.stdata and (c.valu or c.mfma) and c.w & p.stdata:
        n = max(n, 2)
    if p.stdata and (c.vmem or c.ds) and c.w & p.stdata:
        n = max(n, 1)
    if p.salu and ("m0", 0) in p.w and getattr(c, "lds", False):
        n = max(n, 1)
    return n


def scan(seq, errs):
    for j, c in enumerate(seq):
        dist = 0
        for i in range(j - 1, max(-1, j - 24), -1):
            p = seq[i]
            n = need(p, c)
            if n > dist:
                errs.add((p.line, c.line, n, dist, p.text.strip(), c.text.strip()))
            dist += p.states
            if dist >= 20:
                break


def check(text):
    ins, labels = [], {}
    for ln, raw in enumerate(text.split("\n"), 1):
        t = raw.split(";")[0].strip()
        if not t or t.startswith("."):
            continue
        if t.endswith(":"):
            labels[t[:-1]] = len(ins)
            continue
        ins.append(I(raw, ln))
    errs = set()
    seg = []
    for x in ins:
        seg.append(x)
        if x.op in ("s_endpgm", "s_branch"):
            scan(seg, errs); seg = []
    scan(seg, errs)
    for j, x in enumerate(ins):
        if x.op.startswith(("s_cbranch", "s_branch")) and x.ops[0] in labels:
            t = labels[x.ops[0]]
            scan(ins[max(0, j - 24):j + 1] + ins[t:t + 24], errs)
    return sorted(errs)


def fix(text):
    for _ in range(20):
        e = check(text)
        if not e:
            return text
        first = {}
        for pl, cl, n, have, *_ in e:
            if pl not in first or cl < first[pl][0]:
                first[pl] = (cl, n - have)
        pad = {}
        for cl, k in first.values():
            pad[cl] = max(pad.get(cl, 0), k)
        lines = text.split("\n")
        for cl in sorted(pad, reverse=True):
            lines.insert(cl - 1, "    s_nop %d" % (pad[cl] - 1))
        text = "\n".join(lines)
    raise RuntimeError("hazards remain")


if __name__ == "__main__":
    e = check(open(sys.argv[1]).read())
    for x in e:
        print("line %d -> %d need %d have %d: %s  =>  %s" % x)
    print(len(e), "hazards")
```

```python
MB = 1 << 20
S, D, F = 2048, 640, 1728
KVT = 0
YT = 4 * MB
W1P = 8 * MB
W1X = 13 * MB
W2P = 14 * MB
QST = 17 * MB
STX = 18 * MB
EPOCH = 19 * MB
INIT = EPOCH + 256
CNT = EPOCH + 4096
FA = CNT
FY = CNT + 16 * 256
FP = CNT + 48 * 256
FP3 = CNT + 56 * 256
FK = CNT + 64 * 256
FX = CNT + 192 * 256
CNT_BYTES = 256 * 256
LBASE, LSTEP = 32 * MB, 16 * MB
XF_O = 0
ST2_O = 3 * MB
FLAGS_O = 3 * MB + MB // 2
HF_O = 4 * MB
XF = (LBASE + XF_O, LBASE + LSTEP + XF_O)
ST2 = (LBASE + ST2_O, LBASE + LSTEP + ST2_O)
HF = (LBASE + HF_O, LBASE + LSTEP + HF_O)
FLAGS = (LBASE + FLAGS_O, LBASE + LSTEP + FLAGS_O)
FLAG_BYTES = 16 * 1024


def tile_owner(T):
    if T < 32:
        return T >> 1, T & 1
    T -= 32
    return (T // 5, 2 + T % 5) if T < 60 else (12 + (T - 60) // 4, 2 + (T - 60) % 4)


def tile_kslot(T):
    j, t = tile_owner(T)
    idx = 3 * j + t if t < 3 else 48 + 2 * j + t - 3 if t < 5 else 80 + min(2 * j, 12 + j) + t - 5
    return idx >> 1, idx & 1
```

```python
import sys, json
import gen_all
import os
names = os.environ.get("NAMES", "start ygot join0 g1end0 g2end0 join1 g1end1 end").split()
V = [eval(x) for x in sys.argv[1:]]
for i, v in enumerate(V):
    gen_all.build("sw_%d.s" % i, stamps=True, names=names, **v)
json.dump([[str(v) for v in V], names], open("sweep.json", "w"))
print(json.dumps(["work/sw_%d.s" % i for i in range(len(V))]))
```

```python
from asmlib import *
from layout import *
import gen_front as gf
import gen_kf as gk
from gen_kf import *

C1, UO, WSTR = gf.C1, gf.UO, gf.WSTR
KN = NAME + "_kernel"
cA, cB, cY, cW = 20, 24, 25, 26
cD, cACC, cST = 40, 72, 104


class All(KF):
    def init_check(self):
        a = self.a
        ok = a.label("initok")
        a(f"s_cmp_lg_u32 s{sW}, 0\ns_cbranch_scc1 {ok}\ns_mov_b32 s{sT+1}, {INIT}")
        self.spin(f"s{sT+1}", 0, f"s{sNONCE}", ok, dst=62)
        a(f"{ok}:\nv_mov_b32 v{vONE}, 1\nv_mul_u32_u24 v{vFA}, {CS}, v{vL}")

    def touch(self, v):
        if self.p["touch"]:
            a = self.a
            a(f"v_lshlrev_b32 v{v}, 20, v1\nv_add_u32 v{v}, {MB - 128}, v{v}\ns_mov_b32 s{WS+2}, {LBASE + 2 * LSTEP}")
            a(f"buffer_load_dword v{v+1}, v{v}, s[{WS}:{WS+3}], 0 offen\nbuffer_load_dword v{v+2}, v{v}, s[{OUT}:{OUT+3}], 0 offen\ns_mov_b32 s{WS+2}, {LBASE}")

    def a_srds(self):
        for dst, src, nm in ((32, 58, "k"), (36, 60, "v"), (40, 62, "shift")):
            self.a(f"s_mov_b64 s[{dst}:{dst+1}], s[{src}:{src+1}]\ns_mov_b32 s{dst+2}, 0x{NB[nm]:x}\ns_mov_b32 s{dst+3}, 0x20000")

    def a_tile(self, mid):
        a, vm = self.a, self.vm
        WR, KR, VR, PK, WU, KU, VU, O = 184, 192, 216, 232, 56, 72, 116, 124
        a(f"""
v_and_b32 v2, 15, v1
v_lshrrev_b32 v3, 4, v1
v_lshl_add_u32 v3, v3, 3, s25
s_lshl_b32 s26, s23, 6
v_lshl_add_u32 v2, v2, 2, s26
v_mul_u32_u24 v4, 1280, v3
v_lshl_add_u32 v4, v2, 1, v4
v_subrev_u32 v5, 3840, v4
v_lshlrev_b32 v6, 3, v2
s_movk_i32 s27, 5120
""")
        dma = self.p["a_dma"]
        lg = self.lg
        if dma:
            a(f"""
v_bfe_u32 v7, v1, 3, 2
v_lshrrev_b32 v8, 5, v1
v_lshl_add_u32 v7, v7, 3, v8
v_add_u32 v7, s25, v7
v_and_b32 v8, 7, v1
s_lshl_b32 s26, s23, 7
v_lshl_add_u32 v8, v8, 4, s26
s_movk_i32 s27, 1280
v_mad_u32_u24 v7, v7, s27, v8
v_subrev_u32 v8, 3840, v7
v_subrev_u32 v9, 1280, v7
s_mul_i32 s28, s20, 10240
s_add_u32 s28, s28, {RES}
""")
            order = [("k", 0), ("k", 1), ("w", 0), ("k", 2), ("v", 0), ("k", 3), ("v", 1), ("k", 4), ("v", 2), ("k", 5), ("v", 3)]
            td = {}
            for nm, n in order:
                if nm == "w":
                    tw = [vm.issue(f"buffer_load_dwordx4 {R('v', WR+4*i)}, v6, s[40:43], 0 offen offset:{16*i}") for i in range(2)]
                    continue
                off = 2560 * n if nm == "v" else 0 if n < 2 else 2560 * n - 3840
                va = 8 + n if nm == "k" and n < 2 else 7
                a(f"s_add_u32 m0, s28, {1024*n + (6144 if nm == 'v' else 0)}\ns_mov_b32 s27, {off}")
                td[nm, n] = vm.issue(f"buffer_load_dwordx4 v{va}, s[{32 if nm == 'k' else 36}:{35 if nm == 'k' else 39}], s27 offen lds")
            a(f"""
v_mul_u32_u24 v158, {KS}, v2
v_sub_u32 v10, 2040, v3
v_lshl_add_u32 v158, v10, 1, v158
v_lshrrev_b32 v10, 4, v1
v_and_b32 v11, 15, v1
v_lshlrev_b32 v11, 3, v11
v_lshl_add_u32 v11, v10, 7, v11
v_add_u32 v157, s28, v11
""")
            self.st("kvi")
            mid()
            tv = {}

            def fetch(m):
                vm.wait(td["v", m])
                for i in range(0 if m == 0 else 2 * m + 3, 2 * m + 5):
                    lg.issue(f"ds_read_b64 v[{KR+2*i}:{KR+1+2*i}], v157 offset:{512*i}")
                for i in (2 * m, 2 * m + 1):
                    tv[i] = lg.issue(f"ds_read_b64 v[{VR+2*i}:{VR+1+2*i}], v157 offset:{6144+512*i}")
            fetch(0)
        else:
            tv = []
            for i in range(3):
                vm.issue(f"buffer_load_dwordx2 v[{KR+2*i}:{KR+1+2*i}], v5, s[32:35], 0 offen offset:{1280*i}")
            tw = [vm.issue(f"buffer_load_dwordx4 {R('v', WR+4*i)}, v6, s[40:43], 0 offen offset:{16*i}") for i in range(2)]
            for i in range(8):
                so = "0" if i < 4 else "s27"
                vm.issue(f"buffer_load_dwordx2 v[{KR+6+2*i}:{KR+7+2*i}], v4, s[32:35], {so} offen offset:{1280*(i%4)}")
                tv.append(vm.issue(f"buffer_load_dwordx2 v[{VR+2*i}:{VR+1+2*i}], v4, s[36:39], {so} offen offset:{1280*(i%4)}"))
            a(f"v_mul_u32_u24 v158, {KS}, v2\nv_sub_u32 v3, 2040, v3\nv_lshl_add_u32 v158, v3, 1, v158")
            self.st("kvi")
            mid()
            vm.wait(tw[1])
        for c in range(4):
            for j in range(4):
                src, dst = WR + 2 * c + (j >> 1), WU + 4 * j + c
                a(f"v_lshlrev_b32 v{dst}, 16, v{src}" if j % 2 == 0 else f"v_and_b32 v{dst}, 0xffff0000, v{src}")

        def unpack(src, dst):
            for h in range(2):
                a(f"v_lshlrev_b32 v{dst+2*h}, 16, v{src+h}\nv_and_b32 v{dst+2*h+1}, 0xffff0000, v{src+h}")
        if dma:
            lg.wait(tv[0])
        for i in range(3):
            unpack(KR + 2 * i, KU + 4 * i)
        for i in range(8):
            if dma and i in (1, 3, 5):
                fetch(i // 2 + 1)
            (lg if dma else vm).wait(tv[i])
            if i in (0, 7):
                self.st("kv%d" % i)
            unpack(KR + 6 + 2 * i, KU + 12 + 4 * i)
            unpack(VR + 2 * i, VU + 4 * (i & 1))
            for pi in range(2):
                o = O + 4 * i + 2 * pi
                kk = lambda r: f"v[{KU+4*r+2*pi}:{KU+4*r+2*pi+1}]"
                ww = lambda j: f"v[{WU+4*j+2*pi}:{WU+4*j+2*pi+1}]"
                a(f"v_pk_mul_f32 v[{o}:{o+1}], {kk(i)}, {ww(3)}")
                for j in (2, 1, 0):
                    a(f"v_pk_fma_f32 v[{o}:{o+1}], {kk(i+3-j)}, {ww(j)}, v[{o}:{o+1}]")
                vv = VU + 4 * (i & 1) + 2 * pi
                a(f"v_pk_mul_f32 v[{o}:{o+1}], v[{o}:{o+1}], v[{vv}:{vv+1}]")
        for c in range(4):
            for d in range(4):
                a(f"v_cvt_pk_bf16_f32 v{PK+4*c+d}, v{O+4*(7-2*d)+c}, v{O+4*(6-2*d)+c}")
            a(f"s_mov_b32 s{sT}, {KS*c}")
            vm.issue(f"buffer_store_dwordx4 {R('v', PK+4*c)}, v158, s[{WS}:{WS+3}], s{sT} offen sc1")
        self.st("astore")

    def conv_role(self):
        a, vm, lg, p = self.a, self.vm, self.lg, self.p
        a(f"""
s_mul_i32 s101, s22, 20
s_add_u32 s101, s101, s21
s_and_b32 s24, s101, 15
s_lshr_b32 s23, s101, 4
s_lshl_b32 s25, s24, 2
s_add_u32 s25, s25, s20
s_lshl_b32 s25, s25, 5
""")
        self.a_srds()

        def mid():
            a(f"""
s_lshl_b32 s28, s101, 2
s_add_u32 s28, s28, s20
s_lshl_b32 s{sCHN}, s28, 12
s_mul_i32 s80, s28, {KS}
s_lshl_b32 s28, s28, 1
s_mov_b64 s[48:49], s[66:67]
s_mov_b32 s50, 0x{NB['ssmd']:x}
s_mov_b32 s51, 0x20000
s_mov_b64 s[44:45], s[64:65]
s_mov_b32 s46, 0x{NB['ssmk']:x}
s_mov_b32 s47, 0x20000
v_lshlrev_b32 v159, 4, v1
""")
        a(f"buffer_load_dword v181, off, s[{WS}:{WS+3}], s54 sc1")
        self.a_tile(mid)
        a(f"s_mov_b32 s{sT+1}, {INIT}\nv_readfirstlane_b32 s{sNONCE}, v181")
        tst = vm.issue(self.cload(f"s{sT+1}", 0, 182))
        if self.p["warm"] > 1:
            a(f"s_lshr_b32 s{sT+2}, s101, 4\ns_mul_i32 s{sT+2}, s{sT+2}, {CS}\ns_add_u32 s{sT+2}, s{sT+2}, {FA}")
            vm.issue(self.cload(f"s{sT+2}", 0, 183))
        th = []
        for i in range(4):
            vm.issue(f"buffer_load_dwordx4 v[{160+4*i}:{163+4*i}], v159, s[44:47], s{sCHN} offen offset:{1024*i}")
            th.append(vm.issue(f"buffer_load_dword v{176+i}, v159, s[44:47], s{sCHN} offen offset:{1024*i+16}"))
        th.append(vm.issue("buffer_load_ushort v180, off, s[48:51], s28"))
        self.touch(252)
        vm.issued += 2 * self.p["touch"]
        a(f"s_add_u32 s{sNONCE}, s{sNONCE}, 1")
        self.setup_regs()
        a(f"s_mov_b32 s{sT+1}, {INIT}\nv_mov_b32 v{vONE}, 1\nv_mul_u32_u24 v{vFA}, {CS}, v{vL}")
        self.check(tst, f"s{sT+1}", 0, f"s{sNONCE}", dst=182)
        self.st("adrain")
        a("s_barrier")
        a(f"s_lshr_b32 s{sT+1}, s101, 4\ns_mul_i32 s{sT+1}, s{sT+1}, {CS}\ns_add_u32 s{sT+1}, s{sT+1}, {FA}")
        self.arrive(f"s{sT+1}")
        self.st("asig")
        a(f"s_mul_i32 s31, s20, {WSTR}\ns_add_u32 s31, s31, {RING}\nv_add_u32 v{cW}, s31, v{vL16}")
        for r in range(188, 192):
            a(f"v_mov_b32 v{r}, 0")
        a("s_mov_b64 exec, 0x3fffffff")
        lg.issue(f"ds_write_b128 v{cW}, v[188:191] offset:{UO+4096}")
        a("s_mov_b64 exec, 3")
        lg.issue(f"ds_write_b128 v{cW}, v[188:191]")
        a("s_mov_b64 exec, -1")
        for i in range(4):
            b = 160 + 4 * i
            vm.wait(th[i])
            if i == 0:
                a("v_readfirstlane_b32 s30, v160")
            lg.issue(f"ds_write_b128 v{cW}, v[{b}:{b+3}] offset:{32+1024*i}")
            o = 192 + 4 * (i & 1)
            for d in range(4):
                hi = b + d + 1 if d < 3 else 176 + i
                a(f"v_alignbit_b32 v{o+d}, v{hi}, v{b+d}, 16")
            lg.issue(f"ds_write_b128 v{cW}, v[{o}:{o+3}] offset:{C1+32+1024*i}")
        vm.wait(th[4])
        a("""
s_lshl_b32 s30, s30, 16
v_cmp_eq_u32 vcc, 1, v1
v_mov_b32 v181, s30
s_nop 0
v_cndmask_b32 v191, 0, v181, vcc
s_mov_b64 exec, 3
""")
        lg.issue(f"ds_write_b128 v{cW}, v[188:191] offset:{C1}")
        a("""s_mov_b64 exec, -1
v_and_b32 v181, 15, v1
v_lshrrev_b32 v182, 4, v1
v_lshl_add_u32 v183, v182, 3, v181
v_sub_u32 v184, 15, v183
v_lshlrev_b32 v156, 16, v180
""")
        for r in range(4):
            a(f"v_cmp_eq_u32 vcc, {2*r}, v184\ns_nop 1\nv_cndmask_b32 v{cD+r}, 0, v180, vcc\nv_cmp_eq_u32 vcc, {2*r+1}, v184\ns_nop 1\nv_cndmask_b32 v{cD+r}, v{cD+r}, v156, vcc")
        a(f"""
v_add_u32 v{cA}, 1, v183
v_and_b32 v{cA+1}, 1, v{cA}
v_lshrrev_b32 v{cA}, 1, v{cA}
v_lshlrev_b32 v{cA}, 2, v{cA}
v_mul_u32_u24 v{cA+1}, {C1}, v{cA+1}
v_add3_u32 v{cA}, v{cA}, v{cA+1}, s31
v_add_u32 v{cA+1}, 1024, v{cA}
v_add_u32 v{cA+2}, 2048, v{cA}
v_add_u32 v{cA+3}, 3072, v{cA}
v_lshlrev_b32 v{cB}, 4, v182
v_lshlrev_b32 v156, 5, v181
v_sub_u32 v{cB}, v{cB}, v156
s_add_u32 s30, s31, {UO+480}
v_add_u32 v{cB}, s30, v{cB}
v_lshrrev_b32 v{cY}, 1, v182
v_lshl_add_u32 v{cY}, v{cY}, 4, v156
v_and_b32 v182, 1, v182
v_lshl_add_u32 v{cY}, v182, 9, v{cY}
v_add_u32 v{cY}, {YT}, v{cY}
""")
        if p["b_direct"]:
            a(f"s_sub_u32 s30, 0, s31\ns_sub_u32 s30, s30, {UO}\nv_add_u32 v27, s30, v{cB}\ns_add_u32 s28, s{WS}, s80\ns_addc_u32 s29, s{WS+1}, 0\ns_movk_i32 s30, 4096\ns_mov_b32 s31, 0x20000")
        a(f"s_lshr_b32 s{sT+1}, s101, 4\ns_mul_i32 s{sT+1}, s{sT+1}, {CS}\ns_add_u32 s{sT+1}, s{sT+1}, {FA}")
        self.wait0(f"s{sT+1}", 0, 16)
        a("s_barrier")
        vm.reset()
        self.st("agot")
        t = [vm.issue(f"buffer_load_dwordx4 {R('v', cST+4*i)}, v{vL16}, s[{WS}:{WS+3}], s80 offen offset:{1024*i} sc1") for i in range(4)]

        if p["b_direct"]:
            for x in range(8):
                vm.issue(f"buffer_load_dwordx4 {R('a', 32+4*x)}, v27, s[28:31], 0 offen offset:{512*(7-x)} sc1")

        def rdA(q):
            out = []
            for x in range(8):
                r, o = 64 * (q & 1) + 4 * x, 128 * (x & 1) + 16 * (q & 1)
                out.append(f"ds_read2_b32 a[{r}:{r+1}], v{cA+(x>>1)} offset0:{o} offset1:{o+1}")
                out.append(f"ds_read2_b32 a[{r+2}:{r+3}], v{cA+(x>>1)} offset0:{o+2} offset1:{o+3}")
            if q & 1:
                out += [f"v_add_u32 v{cA+i}, 128, v{cA+i}" for i in range(4)]
            return out

        def rdB(q):
            return [f"ds_read_b128 {R('a', 64*(q&1)+32+4*x)}, v{cB} offset:{512*(7-x)+64*q}" for x in range(8)]
        lg.all()
        for r in rdA(0):
            a(r)
        for i in range(4):
            vm.wait(t[i])
            a(f"ds_write_b128 v{cW}, {R('v', cST+4*i)} offset:{UO+1024*i}")
        if p["b_direct"]:
            vm.all()
        else:
            a("s_waitcnt lgkmcnt(0)")
            for r in rdB(0):
                a(r)
        a("s_waitcnt lgkmcnt(0)")
        lg.reset()
        self.st("cstart")
        for j in range(8):
            a(f"v_mfma_f32_16x16x32_bf16 {R('v', cACC+4*j)}, {R('v', cD)}, {R('a', 32+4*j)}, 0")
        S_ = Sched()
        ms = [(q, pp, j) for q in range(7) for pp in range(8) for j in range(pp, 8)] + [(7, pp, j) for j in range(8) for pp in range(j + 1)]
        em = lambda s: (lambda: a(s))
        for q in range(1, 8):
            A, B = rdA(q), rdB(q)
            mix = []
            for x in range(8):
                mix += [B[x], A[2 * x], A[2 * x + 1]]
            S_.spread(36 * (q - 1), 36 * (q - 1) + 30, [em(x) for x in mix + A[16:]])
            S_.add(36 * q - 0.5, em("s_waitcnt lgkmcnt(0)"))

        S_.spread(2.6, 30, self.res_loads()[:5])
        tk = {}
        S_.add(262.6, lambda: tk.__setitem__(0, vm.issue(self.cload(f"s{sREP}", 0))))

        def ypair(q):
            o = cST + 4 * q
            L = [em(f"v_cvt_pk_bf16_f32 v{o+i}, v{cACC+8*q+2*i}, v{cACC+8*q+2*i+1}") for i in range(4)]
            L += [em("s_nop 0"), em(f"v_permlane16_swap_b32 v{o}, v{o+2}\nv_permlane16_swap_b32 v{o+1}, v{o+3}")]
            L.append(lambda: vm.issue(f"buffer_store_dwordx4 {R('v', o)}, v{cY}, s[{WS}:{WS+3}], s80 offen offset:{1024*q} sc1"))
            return L
        for q, end in enumerate((2, 9, 20)):
            S_.spread(252 + end + 6, 252 + end + 13, ypair(q))

        def mf(q, pp, j):
            return lambda: a(f"v_mfma_f32_16x16x32_bf16 {R('v', cACC+4*j)}, {R('a', 64*(q&1)+4*pp)}, {R('a', 64*(q&1)+32+4*(j-pp))}, {R('v', cACC+4*j)}")
        S_.run([mf(*m) for m in ms])
        self.st("cend")
        a("s_nop 5")
        for f in ypair(3):
            f()
        a("s_waitcnt vmcnt(0)\ns_barrier")
        vm.reset()
        a(f"s_mul_i32 s{sT+1}, s101, 3277\ns_lshr_b32 s{sT+1}, s{sT+1}, 16\ns_mul_i32 s{sT+1}, s{sT+1}, {2*CS}\ns_add_u32 s{sT+1}, s{sT+1}, {FY}")
        self.arrive(f"s{sT+1}", nrep=2)
        self.st("ysig")
        self.check(None, f"s{sREP}", 0, 96, sleep=4)
        self.res_loads()[5]()
        self.res_shadow()
        if self.p["t2early"]:
            self.w1_shadow()
        vm.reset()

    def qs_issue(self, job, base):
        a, vm = self.a, self.vm
        a(f"s_lshl_b32 s35, {job}, 2\nv_lshrrev_b32 v2, 4, v1\nv_add_u32 v2, s35, v2\nv_and_b32 v3, 15, v1\nv_mul_u32_u24 v4, 1280, v2\nv_lshl_add_u32 v4, v3, 4, v4".replace("s35", "s55"))
        a(f"v_lshlrev_b32 v{base+20}, 3, v2\nv_add_u32 v{base+20}, {QST}, v{base+20}")
        return [vm.issue(f"buffer_load_dwordx4 {R('v', base+4*n)}, v4, s[{QS}:{QS+3}], 0 offen offset:{256*n}") for n in range(5)]

    def qs_finish(self, t, base):
        a, vm = self.a, self.vm
        s_, q_ = base + 22, base + 23
        a(f"v_mov_b32 v{s_}, 0\nv_mov_b32 v{q_}, 0\nv_mov_b32 v{base+21}, 0x3f803f80")
        for n in range(5):
            vm.wait(t[n])
            for d in range(4):
                r = base + 4 * n + d
                a(f"v_dot2_f32_bf16 v{s_}, v{r}, v{base+21}, v{s_}\nv_dot2_f32_bf16 v{q_}, v{r}, v{r}, v{q_}")
        a("s_nop 2")
        for sh in (8, 4, 2, 1):
            a(f"v_add_f32_dpp v{s_}, v{s_}, v{s_} row_ror:{sh} row_mask:0xf bank_mask:0xf\nv_add_f32_dpp v{q_}, v{q_}, v{q_} row_ror:{sh} row_mask:0xf bank_mask:0xf\ns_nop 0")
        self.moments(s_, q_, base)
        a(f"v_rcp_f32 v{q_}, v{q_}\ns_mov_b32 exec_lo, 0x00010001\ns_mov_b32 exec_hi, 0x00010001")
        vm.issue(f"buffer_store_dwordx2 v[{s_}:{q_}], v{base+20}, s[{WS}:{WS+3}], 0 offen sc1")
        a("s_mov_b64 exec, -1")

    def w1_unit(self):
        a, vm, lg = self.a, self.vm, self.lg
        a(f"""
v_lshrrev_b32 v2, 3, v1
v_and_b32 v3, 7, v1
s_mul_i32 s29, s28, 160
v_add_u32 v4, s29, v2
v_mul_u32_u24 v4, 3456, v4
v_lshl_add_u32 v4, v3, 4, v4
s_lshl_b32 s36, s27, 7
""")
        t = []

        def ld():
            i = len(t)
            if i < 20:
                t.append(vm.issue(f"buffer_load_dwordx4 {R('v', 32+4*i)}, v4, s[32:35], s36 offen"))
                a(f"s_add_u32 s36, s36, {8*3456}")
        for _ in range(self.p["w_ahead"]):
            ld()
        a(f"""
s_mul_i32 s29, s20, 20992
v_bfe_u32 v5, v2, 1, 1
v_lshlrev_b32 v5, 2, v5
v_xor_b32 v5, v5, v3
v_lshlrev_b32 v5, 4, v5
v_lshl_add_u32 v5, v2, 7, v5
v_add_u32 v5, s29, v5
v_bfe_u32 v6, v1, 2, 2
v_lshrrev_b32 v7, 5, v1
v_lshl_add_u32 v7, v7, 3, v6
v_lshlrev_b32 v7, 7, v7
v_bfe_u32 v8, v1, 4, 1
v_bfe_u32 v9, v1, 1, 1
v_lshl_add_u32 v9, v8, 1, v9
v_lshrrev_b32 v6, 1, v6
v_lshlrev_b32 v6, 2, v6
v_xor_b32 v9, v9, v6
v_lshl_add_u32 v7, v9, 4, v7
v_and_b32 v6, 1, v1
v_lshl_add_u32 v7, v6, 3, v7
v_add_u32 v7, s29, v7
v_xor_b32 v6, 64, v7
v_and_b32 v9, 15, v1
v_lshlrev_b32 v9, 4, v9
v_lshl_add_u32 v10, v8, 10, v9
v_mul_u32_u24 v8, 40960, v8
v_add_u32 v8, v8, v9
v_lshrrev_b32 v9, 5, v1
v_lshl_add_u32 v8, v9, 9, v8
s_lshl_b32 s30, s26, 8
s_mul_i32 s31, s27, {4*40960}
s_add_u32 s30, s30, s31
s_mul_i32 s31, s28, 10240
s_add_u32 s30, s30, s31
s_add_u32 s30, s30, {W1P}
s_add_u32 s31, s30, {2*40960}
v_mov_b32 v12, 0x3f803f80
v_mov_b32 v13, 0x3f803f80
v_mov_b32 v14, 0x3f803f80
v_mov_b32 v15, 0x3f803f80
""")
        for ks in range(10):
            for h in range(2):
                i = 2 * ks + h
                vm.wait(t[i])
                lg.issue(f"ds_write_b128 v5, {R('v', 32+4*i)} offset:{1024*i}")
                ld()
            lg.all()
            tk = []
            for pr in range(2):
                b = 16 + 8 * (ks & 1) + 4 * pr
                lg.issue(f"ds_read_b64_tr_b16 v[{b}:{b+1}], v{7-pr} offset:{2048*ks}")
                tk.append(lg.issue(f"ds_read_b64_tr_b16 v[{b+2}:{b+3}], v{7-pr} offset:{2048*ks+512}"))
            for pr in range(2):
                b = 16 + 8 * (ks & 1) + 4 * pr
                lg.wait(tk[pr])
                c = "0" if ks == 0 else f"v[{112+16*pr}:{127+16*pr}]"
                a(f"v_mfma_f32_32x32x16_bf16 v[{112+16*pr}:{127+16*pr}], v[12:15], {R('v', b)}, {c}")
                vm.issue(f"buffer_store_dwordx4 {R('v', b)}, v8, s[{WS}:{WS+3}], s{30+pr} offen sc1")
                a(f"s_add_u32 s{30+pr}, s{30+pr}, 1024")
        a(f"""
s_lshl_b32 s30, s27, 12
s_lshl_b32 s31, s26, 8
s_add_u32 s30, s30, s31
s_lshr_b32 s31, s28, 1
s_lshl_b32 s31, s31, 9
s_add_u32 s30, s30, s31
s_and_b32 s31, s28, 1
s_lshl_b32 s31, s31, 3
s_add_u32 s30, s30, s31
s_add_u32 s30, s30, {W1X}
s_nop 3
""")
        for pr in range(2):
            x, o = 112 + 16 * pr, 20 + 2 * pr
            a(f"""v_cvt_pk_bf16_f32 v17, v{x}, v{x}
v_lshlrev_b32 v18, 16, v17
v_sub_f32 v16, v{x}, v18
v_cvt_pk_bf16_f32 v18, v16, v16
v_lshlrev_b32 v19, 16, v18
v_sub_f32 v16, v16, v19
v_cvt_pk_bf16_f32 v16, v16, v16
v_and_b32 v17, 0xffff, v17
v_or_b32 v{o}, v17, v19
v_and_b32 v{o+1}, 0xffff, v16
s_mov_b64 exec, 0xffffffff""")
            vm.issue(f"buffer_store_dwordx2 v[{o}:{o+1}], v10, s[{WS}:{WS+3}], s30 offen offset:{2048*pr} sc1")
            a("s_mov_b64 exec, -1")

    def w2_lanes(self):
        a = self.a
        for i in range(5):
            a(f"v_add_u32 v115, {64*i}, v1\nv_mul_u32_u24 v116, 3277, v115\nv_lshrrev_b32 v116, 16, v116\nv_mul_u32_u24 v117, 20, v116\nv_sub_u32 v115, v115, v117\nv_lshlrev_b32 v115, 4, v115")
            a(f"v_mad_u32_u24 v{102+i}, v116, s30, v115\nv_mad_u32_u24 v{107+i}, v116, s31, v115\nv_add_u32 v{107+i}, s29, v{107+i}")
        a(f"""
v_bfe_u32 v115, v1, 2, 2
v_bfe_u32 v116, v1, 4, 1
v_lshl_add_u32 v115, v116, 2, v115
v_mul_u32_u24 v115, 352, v115
v_lshrrev_b32 v117, 5, v1
v_lshl_add_u32 v115, v117, 5, v115
v_and_b32 v112, 3, v1
v_lshl_add_u32 v115, v112, 3, v115
v_add_u32 v112, s29, v115
v_and_b32 v115, 15, v1
v_lshlrev_b32 v115, 4, v115
v_lshl_add_u32 v115, v116, 8, v115
v_lshl_add_u32 v113, v117, 10, v115
v_mul_u32_u24 v117, {276480-4096}, v117
v_add_u32 v114, v117, v115
""")

    def w2_load(self, tile, base):
        self.a(f"s_mul_i32 s36, {tile}, 20480\ns_mul_i32 s37, s20, 320\ns_add_u32 s36, s36, s37")
        return [self.vm.issue(f"buffer_load_dwordx4 {R('v', base+4*i)}, v{102+i}, s[32:35], s36 offen") for i in range(5)]

    def w2_tile(self, t, base):
        a, vm, lg = self.a, self.vm, self.lg
        l1, l2, l3 = a.label("w2"), a.label("w2"), a.label("w2")
        a(f"""
s_lshr_b32 s26, s25, 1
s_and_b32 s27, s25, 1
s_cmp_lt_u32 s25, 32
s_cbranch_scc1 {l2}
s_sub_u32 s27, s25, 32
s_cmp_lt_u32 s27, 60
s_cbranch_scc0 {l1}
s_mul_i32 s26, s27, 13108
s_lshr_b32 s26, s26, 16
s_mul_i32 s30, s26, 5
s_sub_u32 s27, s27, s30
s_add_u32 s27, s27, 2
s_branch {l2}
{l1}:
s_sub_u32 s27, s27, 60
s_lshr_b32 s26, s27, 2
s_add_u32 s26, s26, 12
s_and_b32 s27, s27, 3
s_add_u32 s27, s27, 2
{l2}:
s_lshl_b32 s30, s26, 1
s_add_u32 s31, s26, 12
s_min_u32 s31, s31, s30
s_add_u32 s31, s31, 75
s_add_u32 s30, s30, 45
s_cmp_lt_u32 s27, 5
s_cselect_b32 s30, s30, s31
s_mul_i32 s31, s26, 3
s_cmp_lt_u32 s27, 3
s_cselect_b32 s30, s31, s30
s_add_u32 s30, s30, s27
s_lshr_b32 s31, s30, 1
s_mul_i32 s31, s31, 5120
s_and_b32 s30, s30, 1
s_lshl_b32 s30, s30, 9
s_add_u32 s30, s30, s31
s_add_u32 s30, s30, {W2P}
s_mul_i32 s31, s20, {2*276480}
s_add_u32 s30, s30, s31
""")
        for i in range(5):
            vm.wait(t[i])
            lg.issue(f"ds_write_b128 v{107+i}, {R('v', base+4*i)}")
        lg.all()
        tk = []
        for q in range(5):
            b = 56 + 4 * q
            lg.issue(f"ds_read_b64_tr_b16 v[{b}:{b+1}], v112 offset:{64*q}")
            tk.append(lg.issue(f"ds_read_b64_tr_b16 v[{b+2}:{b+3}], v112 offset:{64*q+8*352}"))
        for q in range(5):
            dt = 2 * q
            a(f"s_add_u32 s31, s30, {(dt // 5) * 276480 + (dt % 5) * 1024}")
            lg.wait(tk[q])
            vm.issue(f"buffer_store_dwordx4 {R('v', 56+4*q)}, v{114 if (dt + 1) % 5 == 0 else 113}, s[{WS}:{WS+3}], s31 offen sc1")

    def side_role(self):
        a, vm, lg = self.a, self.vm, self.lg
        lq4, lend, lno = a.label("q4"), a.label("sideend"), a.label("now2")
        a(f"buffer_load_dword v250, off, s[{WS}:{WS+3}], s54 sc1")
        a("s_sub_u32 s101, s21, 20\ns_lshl_b32 s101, s101, 3\ns_add_u32 s101, s101, s22\ns_mul_i32 s53, s20, 96\ns_add_u32 s53, s53, s101")
        full = self.p["zfull"]
        a(f"s_cmp_lg_u32 s53, 383\ns_cbranch_scc1 L_noinit\ns_mov_b32 s25, {CNT}\n" + "\n".join(f"v_mov_b32 v{8+r}, 0" for r in range(4)))
        a(f"v_lshrrev_b32 v2, 3, v1\nv_mul_u32_u24 v2, {CS}, v2\nv_and_b32 v3, 7, v1\nv_lshl_add_u32 v2, v3, 4, v2" if full else f"v_mul_u32_u24 v2, {CS}, v1")

        def zero(n):
            for i in range(n // 8 if full else (n + 63) // 64):
                a(f"buffer_store_dword{'x4 v[8:11]' if full else ' v8'}, v2, s[{WS}:{WS+3}], s25 offen sc1\ns_add_u32 s25, s25, {(8 if full else 64) * CS}")
        zero(48)
        a(f"s_waitcnt vmcnt(0)\nv_add_u32 v4, 1, v250\ns_mov_b32 s26, {INIT}\ns_mov_b64 exec, 1\nbuffer_store_dword v4, off, s[{WS}:{WS+3}], s26 sc1\ns_mov_b64 exec, -1\ns_mov_b32 s25, {FK}")
        zero(128)
        a(f"L_noinit:\ns_waitcnt vmcnt(0)\nv_readfirstlane_b32 s{sNONCE}, v250\ns_mov_b32 s{sT+1}, {INIT}\ns_add_u32 s{sNONCE}, s{sNONCE}, 1")
        if self.p["side_gate"]:
            self.spin(f"s{sT+1}", 0, f"s{sNONCE}", "L_inited", dst=62, sleep=1)
            a("L_inited:")
        self.touch(252)
        self.st("sgo")
        a(f"s_sub_u32 s25, s53, 40\ns_cmp_ge_u32 s53, 328\ns_cselect_b32 s25, s25, 344\ns_cmp_ge_u32 s53, 288\ns_cselect_b32 s53, s25, s53")
        a(f"s_cmp_ge_u32 s53, 344\ns_cbranch_scc1 {lend}\ns_cmp_ge_u32 s53, 216\ns_cbranch_scc1 {lq4}")
        vm.reset(); lg.reset()
        a("s_and_b32 s28, s53, 3\ns_lshr_b32 s27, s53, 3\ns_bitcmp1_b32 s53, 2\ns_cselect_b32 s26, 1, 0\ns_cselect_b64 s[32:33], s[72:73], s[70:71]")
        a(f"s_mov_b32 s34, 0x{NB['wg']:x}\ns_mov_b32 s35, 0x20000")
        self.w1_unit()
        a(f"s_branch {lend}\n{lq4}:")
        vm.reset(); lg.reset()
        a("s_sub_u32 s53, s53, 216\ns_lshl_b32 s53, s53, 2")
        tqs = []
        for i in range(4):
            tqs.append(self.qs_issue("s53", 32 + 24 * i))
            a("s_add_u32 s53, s53, 1")
        for i in range(4):
            self.qs_finish(tqs[i], 32 + 24 * i)
        a(f"{lend}:")
        self.st("wend")
        vm.reset(); lg.reset()
        a("s_waitcnt vmcnt(0)\ns_barrier")
        vm.reset()
        self.init_check()
        a(f"s_mov_b32 s{sT+1}, {FP}")
        self.arrive(f"s{sT+1}", nrep=8)
        self.st("psig")
        l2 = a.label("w2b")
        a(f"s_load_dwordx2 s[32:33], s[0:1], {KA['wd']}\ns_mov_b32 s34, 0x{NB['wd']:x}\ns_mov_b32 s35, 0x20000\ns_mul_i32 s29, s20, 5632\ns_add_u32 s29, s29, {RING+40960}\ns_movk_i32 s30, 1280\ns_movk_i32 s31, 352")
        self.w2_lanes()
        a("""s_sub_u32 s80, s101, 4
s_cmp_lt_u32 s101, 24
s_cselect_b32 s80, 4096, s80
s_cmp_lt_u32 s101, 20
s_cselect_b32 s80, s101, s80
s_sub_u32 s25, s101, 24
s_add_u32 s81, s25, 92
s_cmp_lt_u32 s25, 16
s_cselect_b32 s81, s81, 4096
s_waitcnt lgkmcnt(0)""")
        t1, t2 = self.w2_load("s80", 120), self.w2_load("s81", 140)
        self.setup_regs()
        for f in self.res_loads()[:5]:
            f()
        early = self.p["res_first"]

        def res():
            a(f"v_mov_b32 v{vONE}, 1")
            self.wait0(f"s{sREP}", 0, 96, sleep=1)
            a("s_barrier")
            self.st("pgot")
            for f in self.res_loads()[5:]:
                f()
        if early:
            res()
        a(f"s_cmp_eq_u32 s80, 4096\ns_cbranch_scc1 {lno}\ns_mov_b32 s25, s80")
        self.w2_tile(t1, 120)
        a(f"s_cmp_eq_u32 s81, 4096\ns_cbranch_scc1 {l2}\ns_mov_b32 s25, s81")
        self.w2_tile(t2, 140)
        a(f"{l2}:\ns_waitcnt vmcnt(0)\nv_mov_b32 v{vONE}, 1\nv_mul_u32_u24 v{vFA}, {CS}, v{vL}\ns_mov_b32 s{sT+1}, {FP3}\ns_barrier")
        self.arrive(f"s{sT+1}", nrep=8)
        a(f"{lno}:")
        self.st("w2end")
        vm.reset(); lg.reset()
        if not early:
            res()
        a("s_waitcnt vmcnt(0)")
        vm.reset()

    def gen(self):
        a = self.a
        a.launches.append("; @launch grid=(256,1,1) block=(256,1,1) lds=%d" % KF_LDS)
        a.begin(KN)
        a("s_cmp_ge_u32 s2, 256\ns_cbranch_scc1 L_exit")
        self.st("start")
        a(f"""
s_load_dwordx16 s[56:71], s[0:1], 0
s_load_dwordx8 s[72:79], s[0:1], 64
s_load_dwordx2 s[{WS}:{WS+1}], s[0:1], 96
s_getpc_b64 s[40:41]
L_pc:
s_lshr_b32 s21, s2, 3
s_lshl_b32 s22, s21, 4
v_add_u32 v1, s22, v0
v_lshlrev_b32 v1, 7, v1
v_cmp_gt_u32 vcc, L_code_end-L_pc, v1
v_cmp_gt_u32 s[42:43], 16, v0
s_and_b64 vcc, vcc, s[42:43]
s_and_saveexec_b64 s[42:43], vcc
s_cbranch_execz L_pc_x
global_load_dword v255, v1, s[40:41]
L_pc_x:
s_mov_b64 exec, s[42:43]
v_lshrrev_b32 v1, 6, v0
s_nop 0
v_readfirstlane_b32 s20, v1
s_and_b32 s22, s2, 7
v_and_b32 v1, 63, v0
s_mov_b32 s{WS+2}, {LBASE}
s_mov_b32 s{WS+3}, 0x20000
s_mov_b32 s{LS+2}, {2*LSTEP}
s_mov_b32 s{LS+3}, 0x20000
s_mov_b32 s{OUT+2}, {NB['out']}
s_mov_b32 s{OUT+3}, 0x20000
s_mov_b32 s{QS+2}, {NB['q']}
s_mov_b32 s{QS+3}, 0x20000
s_mov_b32 s54, {EPOCH}
s_waitcnt lgkmcnt(0)
s_mov_b64 s[{QS}:{QS+1}], s[56:57]
s_mov_b64 s[{OUT}:{OUT+1}], s[76:77]
s_mov_b32 s{sINV}, {f32(1/640)}
s_add_u32 s{LS}, s{WS}, {LBASE}
s_addc_u32 s{LS+1}, s{WS+1}, 0
s_cmp_ge_u32 s21, 20
s_cbranch_scc1 L_side
""")
        self.conv_role()
        a("L_ywait:")
        if self.p["warm"]:
            a(self.cload(f"s{sFL}", 0))
        a(f"s_mul_i32 s{sT+1}, s{sCB}, {2*CS}\ns_and_b32 s{sT+2}, s2, 1\ns_mul_i32 s{sT+2}, s{sT+2}, {CS}\ns_add_u32 s{sT+1}, s{sT+1}, s{sT+2}\ns_add_u32 s{sT+1}, s{sT+1}, {FY}")
        self.wait0(f"s{sT+1}", 0, 20)
        a("s_barrier")
        self.st("ygot")
        self.e1()
        self.body()
        a(f"s_cmp_lg_u32 s2, 0\ns_cbranch_scc1 L_noep\nv_mov_b32 v60, s{sNONCE}\ns_mov_b32 s{sT}, {EPOCH}\nbuffer_store_dword v60, off, s[{WS}:{WS+3}], s{sT} sc1\nL_noep:")
        if self.stamps:
            stamp_flush(a, 0, 8, stmp=24)
        a("L_exit:\ns_endpgm")
        self.tails()
        self.tail = []
        a("L_side:")
        self.side_role()
        a("s_branch L_ywait\nL_code_end:")
        a.end(KN, 512, 102, 256)


def build(path, stamps=False, **kw):
    import hazards
    a = Asm()
    k = All(a, stamps=stamps, **kw)
    for key, val in dict(pp_poll=70, pp_chk=100, pp_end=250, w_ahead=12, side_gate=0, touch=0, zfull=0, res_first=0, a_dma=0, b_direct=0).items():
        k.p.setdefault(key, val)
    k.gen()
    if kw.get("show"):
        print(" ".join("%.1f" % x for x in k.load1))
    txt = a.render()
    if kw.get("show"):
        for e in hazards.check(txt):
            print(path, "padded: line %d -> %d need %d have %d: %s => %s" % e)
    open(path, "w").write(hazards.fix(txt))


if __name__ == "__main__":
    build("v12.s", show=1)
    build("v12_st.s", stamps=True, names=["start", "ygot", "join0", "g1end0", "g2end0", "join1", "g1end1", "end"])
    build("v12_pa.s", stamps=True, names=["start", "astore", "asig", "agot", "cstart", "cend", "ysig", "ygot"])
    build("v12_pb.s", stamps=True, names=["start", "wend", "psig", "ygot", "xst0", "bar00", "join0", "g10@-1"])
    build("v12_pc.s", stamps=True, names=["g2end0", "red", "pub", "polled", "xst1", "bar01", "join1", "g11@-1"])
    build("v12_pd.s", stamps=True, names=["start", "sgo", "wend", "psig", "w2end", "pgot", "ygot", "join0"])
    for l in "01":
        build("v12_g1%s.s" % l, stamps=True, names=["join" + l] + ["g1%s@%s" % (l, x) for x in ("-1", "60", "123", "164", "246", "286.5")] + ["g1end" + l])
        build("v12_g2%s.s" % l, stamps=True, names=["g1end" + l] + ["g2%s@%s" % (l, x) for x in ("39", "80", "120", "160", "220")] + ["g2end" + l, "end" if l == "1" else "red"])
    import subprocess
    for f in ("g10", "g11", "g20", "g21"):
        open("v12_%sc.s" % f, "w").write(open("v12_%s.s" % f).read().replace("s_memrealtime", "s_memtime"))
```

```python
from asmlib import *
from layout import *

C1, UO, WSTR = 4160, 8320, 13312
FRONT_LDS = 4 * 20992


def bf16r(a, v):
    a(f"v_cvt_pk_bf16_f32 v{v}, v{v}, v{v}\nv_lshlrev_b32 v{v}, 16, v{v}")


def finalize_stats(a, vs, vq, t):
    a(f"v_mul_f32 v{vs}, {f32(1/640)}, v{vs}")
    a(f"v_mul_f32 v{t}, v{vs}, v{vs}")
    a(f"v_fma_f32 v{vq}, v{vq}, s34, -v{t}")
    a(f"v_max_f32 v{vq}, 0, v{vq}")
    bf16r(a, vs)
    bf16r(a, vq)
    a(f"v_add_f32 v{vq}, {f32(1e-5)}, v{vq}")
    bf16r(a, vq)
    a(f"v_sqrt_f32 v{vq}, v{vq}\ns_nop 0")
    bf16r(a, vq)
    a(f"v_rcp_f32 v{vq}, v{vq}\ns_nop 0")


def ids(a):
    a("""
v_lshrrev_b32 v1, 6, v0
s_lshr_b32 s21, s2, 3
v_readfirstlane_b32 s20, v1
s_and_b32 s22, s2, 7
v_and_b32 v1, 63, v0
""")


def conv_ids(a):
    a("s_mul_i32 s23, s22, 20\ns_add_u32 s23, s23, s21\ns_and_b32 s24, s23, 15\ns_lshr_b32 s23, s23, 4")


def phase_a(a, vm, st_flags, st=None):
    a("""
v_and_b32 v2, 15, v1
v_lshrrev_b32 v3, 4, v1
s_lshl_b32 s25, s24, 7
s_lshl_b32 s26, s20, 5
s_add_u32 s25, s25, s26
v_lshl_add_u32 v3, v3, 3, s25
s_lshl_b32 s26, s23, 6
v_lshl_add_u32 v2, v2, 2, s26
v_mul_u32_u24 v4, 1280, v3
v_lshl_add_u32 v4, v2, 1, v4
v_subrev_u32 v5, 3840, v4
v_lshlrev_b32 v6, 3, v2
s_movk_i32 s27, 5120
""")
    KR, VR, WR = 16, 40, 8
    tw = [vm.issue(f"buffer_load_dwordx4 v[{WR+4*i}:{WR+3+4*i}], v6, s[12:15], 0 offen offset:{16*i}") for i in range(2)]
    tk, tv = [], []
    for i in range(3):
        tk.append(vm.issue(f"buffer_load_dwordx2 v[{KR+2*i}:{KR+1+2*i}], v5, s[4:7], 0 offen offset:{1280*i}"))
    for i in range(8):
        so = "0" if i < 4 else "s27"
        tk.append(vm.issue(f"buffer_load_dwordx2 v[{KR+6+2*i}:{KR+7+2*i}], v4, s[4:7], {so} offen offset:{1280*(i%4)}"))
        tv.append(vm.issue(f"buffer_load_dwordx2 v[{VR+2*i}:{VR+1+2*i}], v4, s[8:11], {so} offen offset:{1280*(i%4)}"))
    a("v_lshlrev_b32 v7, 12, v2\nv_sub_u32 v3, 2040, v3\nv_lshl_add_u32 v7, v3, 1, v7")
    if st:
        st("kvi")
    yield
    WU, KU, VU, O = 56, 72, 116, 124
    vm.wait(tw[1])
    for c in range(4):
        for j in range(4):
            src = WR + 2 * c + (j >> 1)
            dst = WU + 4 * j + c
            a(f"v_lshlrev_b32 v{dst}, 16, v{src}" if j % 2 == 0 else f"v_and_b32 v{dst}, 0xffff0000, v{src}")

    def unpack(src, dst):
        for h in range(2):
            a(f"v_lshlrev_b32 v{dst+2*h}, 16, v{src+h}\nv_and_b32 v{dst+2*h+1}, 0xffff0000, v{src+h}")
    vm.wait(tk[2])
    for i in range(3):
        unpack(KR + 2 * i, KU + 4 * i)
    for i in range(8):
        vm.wait(tv[i])
        if st and i in (0, 7):
            st("kv%d" % i)
        unpack(KR + 6 + 2 * i, KU + 12 + 4 * i)
        unpack(VR + 2 * i, VU + 4 * (i & 1))
        for pi in range(2):
            o = O + 4 * i + 2 * pi
            kk = lambda r: f"v[{KU+4*r+2*pi}:{KU+4*r+2*pi+1}]"
            ww = lambda j: f"v[{WU+4*j+2*pi}:{WU+4*j+2*pi+1}]"
            a(f"v_pk_mul_f32 v[{o}:{o+1}], {kk(i)}, {ww(3)}")
            for j in (2, 1, 0):
                a(f"v_pk_fma_f32 v[{o}:{o+1}], {kk(i+3-j)}, {ww(j)}, v[{o}:{o+1}]")
            vv = VU + 4 * (i & 1) + 2 * pi
            a(f"v_pk_mul_f32 v[{o}:{o+1}], v[{o}:{o+1}], v[{vv}:{vv+1}]")
    for c in range(4):
        p = 16 + 4 * c
        for d in range(4):
            a(f"v_cvt_pk_bf16_f32 v{p+d}, v{O+4*(7-2*d)+c}, v{O+4*(6-2*d)+c}")
        a(f"s_mov_b32 s27, {4096*c}")
        vm.issue(f"buffer_store_dwordx4 v[{p}:{p+3}], v7, s[16:19], s27 offen {st_flags}")


def conv_h_load(a, vm):
    a("""
s_lshl_b32 s28, s23, 6
s_lshl_b32 s29, s24, 2
s_add_u32 s28, s28, s29
s_add_u32 s28, s28, s20
s_lshl_b32 s29, s28, 12
v_lshlrev_b32 v158, 4, v1
s_lshl_b32 s30, s28, 1
v_mov_b32 v159, s30
""")
    t = []
    for i in range(4):
        vm.issue(f"buffer_load_dwordx4 v[{160+4*i}:{163+4*i}], v158, s[40:43], s29 offen offset:{1024*i}")
        t.append(vm.issue(f"buffer_load_dword v{176+i}, v158, s[40:43], s29 offen offset:{1024*i+16}"))
    t.append(vm.issue("buffer_load_ushort v180, v159, s[44:47], 0 offen"))
    return t


def conv_h_stage(a, vm, lg, t):
    a(f"s_mul_i32 s31, s20, {WSTR}\nv_add_u32 v157, s31, v158")
    for r in range(188, 192):
        a(f"v_mov_b32 v{r}, 0")
    a("s_mov_b64 exec, 0x3fffffff")
    lg.issue(f"ds_write_b128 v157, v[188:191] offset:{UO+4096}")
    a("s_mov_b64 exec, 3")
    lg.issue("ds_write_b128 v157, v[188:191]")
    a("s_mov_b64 exec, -1")
    for i in range(4):
        vm.wait(t[i])
        b = 160 + 4 * i
        lg.issue(f"ds_write_b128 v157, v[{b}:{b+3}] offset:{32+1024*i}")
        if i == 0:
            a("v_readfirstlane_b32 s32, v160")
        o = 192 + 4 * (i & 1)
        for d in range(4):
            hi = b + d + 1 if d < 3 else 176 + i
            a(f"v_alignbit_b32 v{o+d}, v{hi}, v{b+d}, 16")
        lg.issue(f"ds_write_b128 v157, v[{o}:{o+3}] offset:{C1+32+1024*i}")
    a("""
s_lshl_b32 s32, s32, 16
v_cmp_eq_u32 vcc, 1, v1
v_mov_b32 v181, s32
s_nop 0
v_cndmask_b32 v191, 0, v181, vcc
s_mov_b64 exec, 3
""")
    lg.issue(f"ds_write_b128 v157, v[188:191] offset:{C1}")
    a("s_mov_b64 exec, -1")
    vm.wait(t[4])
    a("""
v_and_b32 v181, 15, v1
v_lshrrev_b32 v182, 4, v1
v_lshl_add_u32 v183, v182, 3, v181
v_sub_u32 v183, 15, v183
v_lshlrev_b32 v156, 16, v180
""")
    for r in range(4):
        a(f"""v_cmp_eq_u32 vcc, {2*r}, v183
s_nop 1
v_cndmask_b32 v{184+r}, 0, v180, vcc
v_cmp_eq_u32 vcc, {2*r+1}, v183
s_nop 1
v_cndmask_b32 v{184+r}, v{184+r}, v156, vcc""")
    a(f"""
v_lshl_add_u32 v150, v182, 3, v181
v_add_u32 v150, 1, v150
v_and_b32 v151, 1, v150
v_lshrrev_b32 v150, 1, v150
v_lshlrev_b32 v150, 2, v150
v_mul_u32_u24 v151, {C1}, v151
v_add3_u32 v150, v150, v151, s31
v_add_u32 v151, 1024, v150
v_add_u32 v152, 2048, v150
v_add_u32 v153, 3072, v150
v_lshlrev_b32 v154, 4, v182
v_lshlrev_b32 v156, 5, v181
v_sub_u32 v154, v154, v156
s_add_u32 s32, s31, {UO+480}
v_add_u32 v154, s32, v154
v_lshl_add_u32 v155, v182, 3, v156
""")


def conv_main(a, vm, lg, ld_flags, st_flags, stamps=False):
    t = [vm.issue(f"buffer_load_dwordx4 v[{160+4*i}:{163+4*i}], v158, s[16:19], s29 offen offset:{1024*i} {ld_flags}") for i in range(4)]
    for i in range(4):
        vm.wait(t[i])
        lg.issue(f"ds_write_b128 v157, v[{160+4*i}:{163+4*i}] offset:{UO+1024*i}")
    lg.all()
    BUF = (0, 64)
    ACC = 192

    def reads(buf):
        out = []
        for x in range(8):
            b = BUF[buf] + 32 + 4 * x
            out.append(f"ds_read_b128 v[{b}:{b+3}], v154 offset:{512*(7-x)}")
            p = BUF[buf] + 4 * x
            o = 128 * (x & 1)
            out.append(f"ds_read2_b32 v[{p}:{p+1}], v{150+(x>>1)} offset0:{o} offset1:{o+1}")
            out.append(f"ds_read2_b32 v[{p+2}:{p+3}], v{150+(x>>1)} offset0:{o+2} offset1:{o+3}")
        return out

    def bump():
        return [f"v_add_u32 v{150+i}, 64, v{150+i}" for i in range(5)]

    for r in reads(0):
        a(r)
    for r in bump():
        a(r)
    a("s_waitcnt lgkmcnt(0)")
    for j in range(8):
        b = BUF[0] + 32 + 4 * j
        a(f"v_mfma_f32_16x16x32_bf16 v[{ACC+4*j}:{ACC+3+4*j}], v[184:187], v[{b}:{b+3}], 0")
    if stamps: stamp(a, 4)
    a("s_mov_b32 s33, 0")
    lp = a.label("conv")
    a(lp + ":")
    for buf in range(2):
        fill = reads(1 - buf) + bump()
        ms = [(p, j) for p in range(8) for j in range(p, 8)]
        for n, (p, j) in enumerate(ms):
            A = BUF[buf] + 4 * p
            B = BUF[buf] + 32 + 4 * (j - p)
            a(f"v_mfma_f32_16x16x32_bf16 v[{ACC+4*j}:{ACC+3+4*j}], v[{A}:{A+3}], v[{B}:{B+3}], v[{ACC+4*j}:{ACC+3+4*j}]")
            if fill:
                a(fill.pop(0))
        if buf == 1:
            a("s_add_u32 s33, s33, 1\ns_cmp_lt_u32 s33, 4")
        a("s_waitcnt lgkmcnt(0)")
    a(f"s_cbranch_scc1 {lp}")
    if stamps: stamp(a, 5)
    a("s_nop 4")
    for j in range(8):
        c = ACC + 4 * j
        a(f"v_cvt_pk_bf16_f32 v{2*j}, v{c}, v{c+1}\nv_cvt_pk_bf16_f32 v{2*j+1}, v{c+2}, v{c+3}")
        vm.issue(f"buffer_store_dwordx2 v[{2*j}:{2*j+1}], v155, s[36:39], s29 offen offset:{512*j} {st_flags}")
    lg.reset()


def qstats_job(a, vm, sjob):
    a(f"""
s_lshl_b32 s35, {sjob}, 2
v_lshrrev_b32 v2, 4, v1
v_add_u32 v2, s35, v2
v_and_b32 v3, 15, v1
v_mul_u32_u24 v4, 1280, v2
v_lshl_add_u32 v4, v3, 4, v4
v_lshlrev_b32 v5, 3, v2
""")
    t = [vm.issue(f"buffer_load_dwordx4 v[{8+4*n}:{11+4*n}], v4, s[48:51], 0 offen offset:{256*n}") for n in range(5)]
    a("v_mov_b32 v6, 0\nv_mov_b32 v7, 0\nv_mov_b32 v28, 0x3f803f80")
    for n in range(5):
        vm.wait(t[n])
        for d in range(4):
            r = 8 + 4 * n + d
            a(f"v_dot2_f32_bf16 v6, v{r}, v28, v6\nv_dot2_f32_bf16 v7, v{r}, v{r}, v7")
    a("s_nop 2")
    for sh in (8, 4, 2, 1):
        a(f"v_add_f32_dpp v6, v6, v6 row_ror:{sh} row_mask:0xf bank_mask:0xf\nv_add_f32_dpp v7, v7, v7 row_ror:{sh} row_mask:0xf bank_mask:0xf\ns_nop 0")
    finalize_stats(a, 6, 7, 29)
    a("v_cmp_eq_u32 vcc, 0, v3\ns_and_saveexec_b64 s[56:57], vcc")
    vm.issue("buffer_store_dwordx2 v[6:7], v5, s[52:55], 0 offen sc1")
    a("s_mov_b64 exec, s[56:57]")


def w1_job(a, vm, lg, mid=None, st=None):
    a("""
v_lshrrev_b32 v2, 3, v1
v_and_b32 v3, 7, v1
s_mul_i32 s28, s20, 160
v_add_u32 v4, s28, v2
v_mul_u32_u24 v4, 3456, v4
v_lshl_add_u32 v4, v3, 4, v4
s_lshl_b32 s28, s27, 7
""")
    t = []
    for i in range(20):
        t.append(vm.issue(f"buffer_load_dwordx4 v[{32+4*i}:{35+4*i}], v4, s[4:7], s28 offen"))
        a(f"s_add_u32 s28, s28, {8*3456}")
    a(f"""
s_mul_i32 s29, s20, 20480
v_bfe_u32 v5, v2, 1, 1
v_lshlrev_b32 v5, 2, v5
v_xor_b32 v5, v5, v3
v_lshlrev_b32 v5, 4, v5
v_lshl_add_u32 v5, v2, 7, v5
v_add_u32 v5, s29, v5
v_bfe_u32 v6, v1, 2, 2
v_lshrrev_b32 v7, 5, v1
v_lshl_add_u32 v7, v7, 3, v6
v_lshlrev_b32 v7, 7, v7
v_bfe_u32 v8, v1, 4, 1
v_bfe_u32 v9, v1, 1, 1
v_lshl_add_u32 v9, v8, 1, v9
v_lshrrev_b32 v6, 1, v6
v_lshlrev_b32 v6, 2, v6
v_xor_b32 v9, v9, v6
v_lshl_add_u32 v7, v9, 4, v7
v_and_b32 v6, 1, v1
v_lshl_add_u32 v7, v6, 3, v7
v_add_u32 v7, s29, v7
v_xor_b32 v6, 64, v7
v_mul_u32_u24 v8, 40960, v8
v_lshrrev_b32 v9, 5, v1
v_lshl_add_u32 v8, v9, 9, v8
v_and_b32 v9, 15, v1
v_lshl_add_u32 v8, v9, 4, v8
s_lshl_b32 s30, s26, 8
v_add_u32 v8, s30, v8
s_mul_i32 s30, s27, {4*40960}
s_mul_i32 s31, s20, 10240
s_add_u32 s30, s30, s31
s_add_u32 s31, s30, {2*40960}
v_mov_b32 v12, 0x3f803f80
v_mov_b32 v13, 0x3f803f80
v_mov_b32 v14, 0x3f803f80
v_mov_b32 v15, 0x3f803f80
""")
    if st:
        st("wiss")
    if mid:
        mid()
    for ks in range(10):
        for h in range(2):
            i = 2 * ks + h
            vm.wait(t[i])
            if st and i in (0, 9, 19):
                st("wld%d" % i)
            lg.issue(f"ds_write_b128 v5, v[{32+4*i}:{35+4*i}] offset:{1024*i}")
        lg.all()
        tk = []
        for pr in range(2):
            b = 16 + 8 * (ks & 1) + 4 * pr
            lg.issue(f"ds_read_b64_tr_b16 v[{b}:{b+1}], v{7-pr} offset:{2048*ks}")
            tk.append(lg.issue(f"ds_read_b64_tr_b16 v[{b+2}:{b+3}], v{7-pr} offset:{2048*ks+512}"))
        for pr in range(2):
            b = 16 + 8 * (ks & 1) + 4 * pr
            lg.wait(tk[pr])
            c = "0" if ks == 0 else f"v[{112+16*pr}:{127+16*pr}]"
            a(f"v_mfma_f32_32x32x16_bf16 v[{112+16*pr}:{127+16*pr}], v[12:15], v[{b}:{b+3}], {c}")
            vm.issue(f"buffer_store_dwordx4 v[{b}:{b+3}], v8, s[8:11], s{30+pr} offen sc1")
            a(f"s_add_u32 s{30+pr}, s{30+pr}, 1024")
    a(f"""
s_nop 7
s_barrier
v_and_b32 v2, 31, v1
v_lshlrev_b32 v2, 2, v2
s_lshl_b32 s28, s20, 8
v_add_u32 v3, s28, v2
s_nop 1
""")
    lg.issue("ds_write_b32 v3, v112")
    lg.issue("ds_write_b32 v3, v128 offset:128")
    lg.all()
    a("s_barrier\nv_and_b32 v2, 15, v1\nv_lshlrev_b32 v2, 2, v2\ns_lshl_b32 s28, s20, 6\nv_add_u32 v2, s28, v2")
    for i in range(4):
        lg.issue(f"ds_read_b32 v{16+i}, v2 offset:{256*i}")
    lg.all()
    a("""
v_add_f32 v16, v16, v17
v_add_f32 v18, v18, v19
v_add_f32 v16, v16, v18
v_cvt_pk_bf16_f32 v17, v16, v16
v_lshlrev_b32 v18, 16, v17
v_sub_f32 v16, v16, v18
v_cvt_pk_bf16_f32 v18, v16, v16
v_lshlrev_b32 v19, 16, v18
v_sub_f32 v16, v16, v19
v_cvt_pk_bf16_f32 v16, v16, v16
v_and_b32 v17, 0xffff, v17
v_or_b32 v20, v17, v19
v_and_b32 v21, 0xffff, v16
v_mov_b32 v22, 0
v_mov_b32 v23, 0
v_cmp_gt_u32 vcc, 16, v1
v_and_b32 v2, 15, v1
v_lshlrev_b32 v2, 4, v2
v_cndmask_b32 v20, 0, v20, vcc
v_cndmask_b32 v21, 0, v21, vcc
v_bfe_u32 v3, v1, 4, 1
v_lshl_add_u32 v2, v3, 9, v2
s_lshl_b32 s28, s27, 2
s_add_u32 s28, s28, s20
s_lshl_b32 s28, s28, 10
s_lshl_b32 s29, s26, 8
s_add_u32 s28, s28, s29
s_mov_b64 exec, 0xffffffff
""")
    vm.issue("buffer_store_dwordx4 v[20:23], v2, s[12:15], s28 offen sc1")
    a("s_mov_b64 exec, -1")


def w2_job(a, vm, lg, mid=None, st=None):
    a("s_mul_i32 s28, s25, 20480\nv_lshlrev_b32 v4, 4, v1")
    t = []
    for i in range(20):
        t.append(vm.issue(f"buffer_load_dwordx4 v[{32+4*i}:{35+4*i}], v4, s[4:7], s28 offen offset:{1024*(i%4)}"))
        if i % 4 == 3:
            a("s_add_u32 s28, s28, 4096")
    l1, l2, l3 = a.label("w2"), a.label("w2"), a.label("w2")
    a(f"""
s_cmp_lt_u32 s25, 84
s_cbranch_scc0 {l1}
s_mul_i32 s26, s25, 9363
s_lshr_b32 s26, s26, 16
s_mul_i32 s27, s26, 7
s_sub_u32 s27, s25, s27
s_branch {l2}
{l1}:
s_sub_u32 s27, s25, 84
s_mul_i32 s26, s27, 10923
s_lshr_b32 s26, s26, 16
s_mul_i32 s30, s26, 6
s_sub_u32 s27, s27, s30
s_add_u32 s26, s26, 12
{l2}:
s_lshl_b32 s30, s26, 1
s_add_u32 s31, s26, 12
s_min_u32 s31, s31, s30
s_add_u32 s31, s31, 75
s_add_u32 s30, s30, 45
s_cmp_lt_u32 s27, 5
s_cselect_b32 s30, s30, s31
s_mul_i32 s31, s26, 3
s_cmp_lt_u32 s27, 3
s_cselect_b32 s30, s31, s30
s_add_u32 s30, s30, s27
s_lshr_b32 s31, s30, 1
s_mul_i32 s31, s31, 5120
s_and_b32 s30, s30, 1
s_lshl_b32 s30, s30, 9
s_add_u32 s30, s30, s31
s_mul_i32 s29, s20, 20992
v_bfe_u32 v6, v1, 2, 2
v_bfe_u32 v7, v1, 4, 1
v_lshl_add_u32 v6, v7, 2, v6
v_mul_u32_u24 v6, 1312, v6
v_lshrrev_b32 v8, 5, v1
v_lshl_add_u32 v6, v8, 5, v6
v_and_b32 v9, 3, v1
v_lshl_add_u32 v6, v9, 3, v6
v_add_u32 v6, s29, v6
v_and_b32 v9, 15, v1
v_lshlrev_b32 v9, 4, v9
v_lshl_add_u32 v9, v7, 8, v9
v_lshl_add_u32 v10, v8, 10, v9
v_mul_u32_u24 v8, {276480-4096}, v8
v_add_u32 v11, v8, v9
""")
    if st:
        st("wiss")
    if mid:
        mid()
    for i in range(20):
        a(f"v_add_u32 v2, {64*i}, v1\nv_mul_u32_u24 v3, 52429, v2\nv_lshrrev_b32 v3, 22, v3\nv_lshlrev_b32 v2, 4, v2\nv_lshl_add_u32 v2, v3, 5, v2\nv_add_u32 v2, s29, v2")
        vm.wait(t[i])
        if st and i in (0, 9, 19):
            st("wld%d" % i)
        lg.issue(f"ds_write_b128 v2, v[{32+4*i}:{35+4*i}]")
    lg.all()
    tk = []
    for q in range(20):
        b = 32 + 4 * q
        lg.issue(f"ds_read_b64_tr_b16 v[{b}:{b+1}], v6 offset:{64*q}")
        tk.append(lg.issue(f"ds_read_b64_tr_b16 v[{b+2}:{b+3}], v6 offset:{64*q+8*1312}"))
        if q >= 4:
            w2_store(a, vm, lg, tk, q - 4)
    for q in range(16, 20):
        w2_store(a, vm, lg, tk, q)


def w2_store(a, vm, lg, tk, q):
    b = 32 + 4 * q
    dt = 2 * q
    off = (dt // 5) * 276480 + (dt % 5) * 1024
    a(f"s_add_u32 s31, s30, {off}")
    lg.wait(tk[q])
    vm.issue(f"buffer_store_dwordx4 v[{b}:{b+3}], v{11 if (dt + 1) % 5 == 0 else 10}, s[8:11], s31 offen sc1")


def side_jobs(a, code_lo, code_bytes):
    vm, lg = Cnt(a, "vmcnt", 63), Cnt(a, "lgkmcnt", 15)
    lw2, lmisc, lq = a.label("w2job"), a.label("misc"), a.label("qs")
    a.srd(48, "q"); a.srd(52, "ws"); a.srd(8, "ws"); a.srd(12, "ws")
    a(f"s_mov_b32 s34, {f32(1/640)}\ns_sub_u32 s25, s21, 20\ns_lshl_b32 s25, s25, 3\ns_add_u32 s25, s25, s22\ns_mov_b32 s58, s25")
    a(f"s_cmp_ge_u32 s25, 54\ns_cbranch_scc1 {lw2}")
    a(f"s_cmp_ge_u32 s25, 27\ns_cselect_b32 s26, 1, 0\ns_cselect_b32 s27, 27, 0\ns_sub_u32 s27, s25, s27")
    a(f"s_lshl_b32 s28, s26, 3\ns_add_u32 s28, s28, {KA['wg']}\ns_load_dwordx2 s[4:5], s[0:1], s28\ns_waitcnt lgkmcnt(0)")
    a.srd_fin(4, "wg"); a.srd_fin(8, "ws", W1P, 108 * 40960); a.srd_fin(12, "ws", W1X, 108 * 1024)
    a.srd_fin(48, "q"); a.srd_fin(52, "ws", QST, S * 8)
    w1_job(a, vm, lg)
    a(f"s_branch {lq}")
    a(f"{lw2}:\ns_cmp_ge_u32 s25, 81\ns_cbranch_scc1 {lmisc}")
    vm.reset(); lg.reset()
    a.srd(4, "wd")
    a("s_sub_u32 s25, s25, 54\ns_lshl_b32 s25, s25, 2\ns_add_u32 s25, s25, s20\ns_waitcnt lgkmcnt(0)")
    a.srd_fin(4, "wd"); a.srd_fin(8, "ws", W2P, 8 * 276480)
    a.srd_fin(48, "q"); a.srd_fin(52, "ws", QST, S * 8)
    w2_job(a, vm, lg)
    a(f"{lq}:\ns_lshl_b32 s58, s58, 2\ns_add_u32 s58, s58, s20\ns_cmp_ge_u32 s58, 272\ns_cbranch_scc1 L_front_end")
    vm.reset()
    qstats_job(a, vm, "s58")
    a("s_branch L_front_end")
    a(f"{lmisc}:\ns_waitcnt lgkmcnt(0)")
    a.srd_fin(8, "ws", FLAGS[0], LSTEP + FLAG_BYTES); a.srd_fin(12, "ws", STX, S * 64)
    a.srd_fin(48, "q"); a.srd_fin(52, "ws", QST, S * 8)
    vm.reset()
    lnm = a.label("nomisc")
    a(f"s_cmp_lt_u32 s25, 88\ns_cbranch_scc1 {lnm}")
    a(f"s_sub_u32 s26, s25, 88\ns_and_b32 s27, s26, 3\ns_lshl_b32 s27, s27, 12\ns_lshr_b32 s28, s26, 2\ns_mul_i32 s28, s28, {LSTEP}\ns_add_u32 s27, s27, s28\nv_lshlrev_b32 v2, 4, v0")
    for r in range(4):
        a(f"v_mov_b32 v{8+r}, 0\nv_mov_b32 v{12+r}, -1")
    vm.issue("buffer_store_dwordx4 v[8:11], v2, s[8:11], s27 offen sc1")
    a("s_lshl_b32 s27, s26, 14")
    for i in range(4):
        vm.issue("buffer_store_dwordx4 v[12:15], v2, s[12:15], s27 offen sc1")
        a("s_add_u32 s27, s27, 4096")
    if code_bytes:
        lpc = a.label("pc")
        a(f"s_getpc_b64 s[4:5]\n{lpc}:\ns_add_u32 s4, s4, {code_lo}-{lpc}\ns_addc_u32 s5, s5, 0\nv_lshlrev_b32 v3, 7, v0")
        for i in range(2):
            a(f"v_cmp_gt_u32 vcc, {code_bytes}, v3\ns_and_saveexec_b64 s[56:57], vcc\ns_cbranch_execz {lpc}_{i}")
            vm.issue("global_load_dword v16, v3, s[4:5]")
            a(f"{lpc}_{i}:\ns_mov_b64 exec, s[56:57]\nv_add_u32 v3, 32768, v3")
    a(f"{lnm}:\ns_sub_u32 s58, s25, 81\ns_lshl_b32 s58, s58, 2\ns_add_u32 s58, s58, s20\ns_lshl_b32 s58, s58, 2\ns_add_u32 s58, s58, 272\ns_add_u32 s59, s58, 4")
    lql = a.label("qloop")
    a(lql + ":")
    vm.reset()
    qstats_job(a, vm, "s58")
    a(f"s_add_u32 s58, s58, 1\ns_cmp_lt_u32 s58, s59\ns_cbranch_scc1 {lql}")
    a("s_branch L_front_end")


def gen_front_split(a, stamps=False, code_lo=None, code_bytes=0):
    a.launch("ka_kernel", 160, 256, 0)
    a.launch("kb_kernel", 256, 256, FRONT_LDS)
    vm, lg = Cnt(a, "vmcnt", 63), Cnt(a, "lgkmcnt", 15)
    a.begin("ka_kernel")
    a("s_cmp_ge_u32 s2, 160\ns_cbranch_scc1 L_ka_exit")
    if stamps: stamp(a, 0)
    a.srd(4, "k"); a.srd(8, "v"); a.srd(12, "shift"); a.srd(16, "ws")
    ids(a); conv_ids(a)
    a("s_waitcnt lgkmcnt(0)")
    a.srd_fin(4, "k"); a.srd_fin(8, "v"); a.srd_fin(12, "shift"); a.srd_fin(16, "ws", KVT, S * D * 2)
    for _ in phase_a(a, vm, "sc1"):
        pass
    if stamps:
        stamp(a, 1); a("s_waitcnt vmcnt(0)"); stamp(a, 2); stamp_flush(a, 0, 3)
    a("L_ka_exit:\ns_endpgm")
    a.end("ka_kernel", 160, 102)

    vm.reset(); lg.reset()
    a.begin("kb_kernel")
    a("s_cmp_ge_u32 s2, 256\ns_cbranch_scc1 L_kb_exit")
    if stamps: stamp(a, 0)
    ids(a)
    a("v_mov_b32 v255, v0\ns_cmp_ge_u32 s21, 20\ns_cbranch_scc1 L_side")
    a.srd(40, "ssmk"); a.srd(44, "ssmd"); a.srd(16, "ws"); a.srd(36, "ws")
    conv_ids(a)
    a("s_waitcnt lgkmcnt(0)")
    a.srd_fin(40, "ssmk"); a.srd_fin(44, "ssmd"); a.srd_fin(16, "ws", KVT, S * D * 2); a.srd_fin(36, "ws", YT, S * D * 2)
    t = conv_h_load(a, vm)
    conv_h_stage(a, vm, lg, t)
    if stamps: stamp(a, 1)
    conv_main(a, vm, lg, "", "sc1", stamps)
    a("s_branch L_front_end\nL_side:")
    if stamps: stamp(a, 1)
    side_jobs(a, code_lo, code_bytes)
    a("L_front_end:")
    if stamps:
        stamp(a, 2); a("s_waitcnt vmcnt(0)"); stamp(a, 3); a("v_mov_b32 v0, v255"); stamp_flush(a, 1, 6)
    a("L_kb_exit:\ns_endpgm")
    a.end("kb_kernel", 256, 102)


if __name__ == "__main__":
    import sys, hazards
    a = Asm()
    gen_front_split(a, stamps=True)
    txt = a.render()
    open("front.s", "w").write(txt)
    for e in hazards.check(txt):
        print("HAZARD line %d -> %d need %d have %d: %s => %s" % e)
```

```python
import math
from asmlib import *
from layout import *
from gen_front import bf16r

WS, LS, OUT, QS = 4, 8, 12, 16
sW, sRB, sJH, sCB = 20, 21, 22, 23
sT = 24
sCH = 32
sTB = 42
sHS = 49
sK = 56
sHB, sWB, sXS, sXA, sFL, sM0, sINV, sEX, sEX6, sSP = 70, 71, 72, 73, 74, 75, 76, 77, 78, 79
sH, sWd = 80, 81
sYO, sNONCE, sCHN, sREP = 82, 83, 100, 3
vL, vL16, vT16, vRD, vHST, vHL, vL16B, vXST, vST, vSTX, vG1S, vOUT, vONE, vPOLL = 1, 2, 3, 4, 7, 8, 12, 13, 14, 15, 16, 17, 18, 19
vFA = 6
vTB, vXA, vWD = 6, 47, 16
vY, vXR, vEXT, vC0, vC1, vR, vQS = 20, 30, 40, 44, 45, 46, 47
vWF, vET, vACC = 48, 72, 92
vG2 = 72
RES, RING, NSLOT = 8192, 8192 + 81920, 18
DUMMY = 0x08000000
KF_LDS = 163840
SPIN = 30000
P = dict(fe_pub=204, fe_poll=234, fe_chk=246, fm_pub=260, fm_poll=2, fm_chk=58, fl_pub=56, fl_poll=115, fl_chk=158, tl=2, e2_hi=182, e4_hi=238, look=4,
         names=["start", "join0", "g1end0", "g2end0", "xch", "join1", "g1end1", "g2end1"], out_flags="", c_ahead=2, c_pace=10.5, f_split=10, ext_at=60, ko=8, e5_hi=282,
         wd_lo=100, wd_hi=246, wd_early=6, w2_lo=30, w2_hi=58, nsh=(10, 10), t2early=0, t2pf=0, dup=0, warm=1, head=0, mapR=0, hs='sc1', hs_h='sc1', hs_e='', xk=12, w2b=(10, 116, 158), f_lo=4, f_pace=1.1, cap1=5.25, cap2=1.5, lead=2, lag=5, ah=6, we=4, vcost=2.5, pace2=0.7)


def R(kind, b):
    return f"{kind}[{b}:{b+3}]"


class Sched:
    def __init__(self, cap=99, lead=2, lag=4):
        self.cap, self.lead, self.lag = cap, lead, lag
        self.fixed, self.streams = [], []

    def add(self, pos, fn, cost=1):
        self.fixed.append((pos, len(self.fixed), fn, cost))

    def spread(self, lo, hi, fns):
        for i, f in enumerate(fns):
            self.add(lo + (hi - lo) * i / max(1, len(fns)), f)

    def stream(self, lo, hi, items, deadline=None, pace=0):
        tot = sum(x[1] for x in items) or 1
        acc, q, nxt = 0, [], lo
        for x in items:
            e = max(lo, x[2]) if len(x) > 2 else lo
            t = max(lo + (hi - lo) * acc / tot, e, nxt)
            q.append((t, e, deadline, x[0], x[1]))
            acc += x[1]
            nxt = t + pace * x[1]
        self.streams.append(q)

    def run(self, mfmas, pre=lambda n: 0):
        fx = sorted(self.fixed, key=lambda x: (x[0], x[1]))
        k = 0
        while k < len(fx) and fx[k][0] < 0:
            fx[k][2](); k += 1
        self.load = []
        for n, m in enumerate(mfmas):
            m()
            here = []
            while k < len(fx) and fx[k][0] < n + 1:
                here.append(fx[k]); k += 1
            used = sum(x[3] for x in here) + pre(n + 1)
            for x in here:
                if x[0] - n < 0.5:
                    x[2]()
            while True:
                c = [q for q in self.streams if q and q[0][1] <= n and q[0][0] <= n + self.lead]
                c.sort(key=lambda q: q[0][0])
                pick = None
                for q in c:
                    tgt, _, dl, _, cost = q[0]
                    left = sum(1 for _ in q)
                    if used + cost <= self.cap or used == 0 or tgt <= n - self.lag or (dl is not None and dl <= n):
                        pick = q
                        break
                if pick is None:
                    break
                it = pick.pop(0)
                it[3](); used += it[4]
            for x in here:
                if x[0] - n >= 0.5:
                    x[2]()
            self.load.append(used)
        while k < len(fx):
            fx[k][2](); k += 1
        for q in self.streams:
            while q:
                q.pop(0)[3]()


def cost_of(s):
    op = s.split()[0]
    return 2 if op[:5] in ("v_exp", "v_rcp", "v_sqr") else 0.75 if op[:2] == "s_" else 1


class KF:
    def __init__(self, a, stamps=False, stop=None, **kw):
        self.a, self.stamps, self.stop = a, stamps, stop
        self.p = dict(P); self.p.update(kw)
        self.vm, self.lg = Cnt(a, "vmcnt", 63), Cnt(a, "lgkmcnt", 15)
        self.tail = []
        self.wslots = [("v", 156 + 4 * i) for i in range(25)] + [("a", 160 + 4 * i) for i in range(24)]

    def st(self, name):
        if self.stamps and name in self.p["names"]:
            stamp(self.a, self.p["names"].index(name))

    def probes(self, S_, phase):
        for nm in self.p["names"] if self.stamps else []:
            if nm.startswith(phase + "@"):
                S_.add(float(nm.split("@")[1]), (lambda nm: (lambda: self.st(nm)))(nm))

    def arrive(self, soff, imm=0, nrep=1, wave=0):
        a = self.a
        l = a.label("sig")
        if wave is not None:
            a(f"s_cmp_lg_u32 s{sW}, {wave}\ns_cbranch_scc1 {l}")
        a(f"s_mov_b64 exec, {(1 << nrep) - 1}")
        va = ("off", "") if nrep == 1 else (f"v{vFA}", " offen")
        a(f"buffer_atomic_add v{vONE}, {va[0]}, s[{WS}:{WS+3}], {soff}{va[1]} offset:{imm} sc1")
        a(f"s_mov_b64 exec, -1\n{l}:")

    def cload(self, soff, imm, dst=vPOLL):
        return f"buffer_load_dword v{dst}, off, s[{WS}:{WS+3}], {soff} offset:{imm} sc1"

    def spin(self, soff, imm, n, done, sleep=0, dst=vPOLL):
        a = self.a
        l = a.label("spin")
        op = "ge" if isinstance(n, int) else "eq"
        a(f"""s_movk_i32 s{sSP}, {SPIN}
{l}:
{self.cload(soff, imm, dst)}
s_waitcnt vmcnt(0)
v_readfirstlane_b32 s{sT}, v{dst}
s_cmp_{op}_u32 s{sT}, {n}
s_cbranch_scc1 {done}
{"s_sleep %d" % sleep if sleep else ""}
s_sub_u32 s{sSP}, s{sSP}, 1
s_cbranch_scc0 {l}
s_branch {done}""".replace("\n\n", "\n"))

    def wait0(self, soff, imm, n, sleep=0):
        got = self.a.label("got")
        self.a(f"s_cmp_lg_u32 s{sW}, 0\ns_cbranch_scc1 {got}")
        self.spin(soff, imm, n, got, sleep)
        self.a(got + ":")

    def check(self, tok, soff, imm, n, dst=vPOLL, sleep=0):
        a = self.a
        slow, done = a.label("slow"), a.label("ok")
        op = "ge" if isinstance(n, int) else "eq"
        self.vm.wait(tok)
        a(f"v_readfirstlane_b32 s{sT}, v{dst}\ns_cmp_{op}_u32 s{sT}, {n}\ns_cbranch_scc0 {slow}\n{done}:")
        self.tail.append((slow, lambda: self.spin(soff, imm, n, done, dst=dst, sleep=sleep)))

    def gate(self, S_, soff, imm, n, p1, p2):
        tk = {}
        S_.add(p1, lambda: tk.__setitem__(0, self.vm.issue(self.cload(soff, imm))))
        S_.add(p2, lambda: self.check(tk[0], soff, imm, n))

    def signal(self, kind):
        self.arrive(f"s{sFL}", 256 * kind)

    def row_reduce(self, regs, tmp, halves=(16, 32)):
        a = self.a
        for h in halves:
            for i, r in enumerate(regs):
                a(f"v_mov_b32 v{tmp+i}, v{r}")
            a("s_nop 0" if len(regs) > 1 else "s_nop 1")
            for i, r in enumerate(regs):
                a(f"v_permlane{h}_swap_b32 v{r}, v{tmp+i}")
            for i, r in enumerate(regs):
                a(f"v_add_f32 v{r}, v{r}, v{tmp+i}")

    def row_sums(self, XV, T):
        a = self.a
        a(f"v_pk_add_f32 v[{T}:{T+1}], v[{XV}:{XV+1}], v[{XV+2}:{XV+3}]\nv_pk_mul_f32 v[{T+2}:{T+3}], v[{XV}:{XV+1}], v[{XV}:{XV+1}]")
        for d in range(1, 10):
            x = f"v[{XV+2*d}:{XV+2*d+1}]"
            if d > 1:
                a(f"v_pk_add_f32 v[{T}:{T+1}], v[{T}:{T+1}], {x}")
            a(f"v_pk_fma_f32 v[{T+2}:{T+3}], {x}, {x}, v[{T+2}:{T+3}]")
        a(f"v_add_f32 v{T+4}, v{T}, v{T+1}\nv_add_f32 v{T+5}, v{T+2}, v{T+3}")
        self.row_reduce([T + 4, T + 5], T)

    def moments(self, vs, vq, t):
        a = self.a
        a(f"v_mul_f32 v{vs}, s{sINV}, v{vs}\nv_mul_f32 v{t}, v{vs}, v{vs}\nv_fma_f32 v{vq}, v{vq}, s{sINV}, -v{t}\nv_max_f32 v{vq}, 0, v{vq}")
        bf16r(a, vs); bf16r(a, vq)
        a(f"v_add_f32 v{vq}, {f32(1e-5)}, v{vq}")
        bf16r(a, vq)
        a(f"v_sqrt_f32 v{vq}, v{vq}\ns_nop 0")
        bf16r(a, vq)

    def setup_regs(self):
        a = self.a
        t = sT
        if self.p["mapR"]:
            M = f"s_bfe_u32 s{sJH}, s2, 0x10006\ns_and_b32 s{sRB}, s2, 7\ns_lshl_b32 s{sRB}, s{sRB}, 1\ns_lshr_b32 s{t+1}, s2, 7\ns_add_u32 s{sRB}, s{sRB}, s{t+1}"
        else:
            M = f"s_and_b32 s{sJH}, s2, 1\ns_bfe_u32 s{sRB}, s2, 0x20001\ns_lshl_b32 s{sRB}, s{sRB}, 2\ns_lshr_b32 s{t+1}, s{t}, 3\ns_add_u32 s{sRB}, s{sRB}, s{t+1}"
        a(f"""
s_lshr_b32 s{t}, s2, 3
{M}
s_lshr_b32 s{t+1}, s{t}, 3
s_and_b32 s{sCB}, s{t}, 7
s_lshl_b32 s{t+1}, s{t+1}, 1
s_add_u32 s{t+1}, s{t+1}, s{sCB}
v_lshlrev_b32 v{vL16}, 4, v{vL}
v_lshlrev_b32 v{vT16}, 4, v0
v_and_b32 v40, 15, v{vL}
v_lshrrev_b32 v41, 4, v{vL}
s_lshl_b32 s{t+2}, s{sRB}, 7
s_lshl_b32 s{t+3}, s{sJH}, 6
s_add_u32 s{t+3}, s{t+3}, s{t+2}
s_lshl_b32 s{t+4}, s{sW}, 4
s_add_u32 s{t+3}, s{t+3}, s{t+4}
v_add_u32 v42, s{t+3}, v40
v_mul_u32_u24 v{vOUT}, 1280, v42
s_mul_i32 s{t+4}, s{sCB}, 160
v_lshl_add_u32 v43, v41, 3, s{t+4}
v_add_u32 v{vOUT}, v{vOUT}, v43
s_lshl_b32 s{sWB}, s{t+3}, 3
s_add_u32 s{sWB}, s{sWB}, {QST}
s_mul_i32 s{t+4}, s{sCB}, {80*KS}
s_lshl_b32 s{t+5}, s{t+3}, 1
s_add_u32 s{t+4}, s{t+4}, s{t+5}
s_add_u32 s{sYO}, s{t+4}, {YT}
s_lshl_b32 s{t+4}, s{sJH}, 3
s_add_u32 s{t+4}, s{t+4}, s{sCB}
s_mul_i32 s{t+6}, s{t+4}, 5
s_lshl_b32 s{t+7}, s{t+4}, 2
s_add_u32 s{t+7}, s{t+7}, 12
s_min_u32 s{t+6}, s{t+6}, s{t+7}
s_add_u32 s{t+6}, s{t+6}, 32
s_lshl_b32 s{sEX}, s{t+4}, 11
s_add_u32 s{sEX}, s{sEX}, {W1X}
s_lshl_b32 s{sEX6}, s{t+6}, 10
s_add_u32 s{sEX6}, s{sEX6}, {W1X}
s_mul_i32 s{sTB}, s{t+4}, 81920
s_add_u32 s{sTB}, s{sTB}, {W1P}
s_mul_i32 s{sTB+2}, s{t+6}, 40960
s_add_u32 s{sTB+2}, s{sTB+2}, {W1P}
s_lshl_b32 s{sM0}, s{sW}, 10
s_add_u32 s{sM0}, s{sM0}, {RING}
s_sub_u32 s{t+6}, s{t+1}, 10
s_cselect_b32 s{t+6}, s{t+1}, s{t+6}
s_lshl_b32 s{sCH}, s{t+6}, 12
""".replace("v40", "v60").replace("v41", "v61").replace("v42", "v62").replace("v43", "v63"))
        for c in range(1, 10):
            a(f"s_add_u32 s{sCH+c}, s{sCH+c-1}, 4096\ns_cmp_eq_u32 s{sCH+c}, 40960\ns_cselect_b32 s{sCH+c}, 0, s{sCH+c}")
        a(f"""
v_add_u32 v{vRD}, 65536, v{vL16}
v_add_u32 v{vRD+1}, 131072, v{vL16}
s_lshl_b32 s{t+4}, s{t+3}, 6
v_lshl_add_u32 v{vSTX}, v60, 3, s{t+4}
s_lshl_b32 s{t+4}, s{sCB}, 7
v_add_u32 v{vST}, s{t+4}, v{vSTX}
v_lshl_add_u32 v{vSTX}, v61, 8, v{vSTX}
v_add_u32 v{vSTX}, {STX}, v{vSTX}
v_lshrrev_b32 v63, 1, v61
v_lshlrev_b32 v63, 5, v63
v_add_u32 v63, v63, v60
s_and_b32 s{t+4}, s{sW}, 1
s_lshl_b32 s{t+4}, s{t+4}, 4
v_add_u32 v63, s{t+4}, v63
v_lshlrev_b32 v63, 4, v63
v_and_b32 v66, 1, v61
v_lshl_add_u32 v{vXST}, v66, 10, v63
s_lshr_b32 s{t+4}, s{t+3}, 5
s_mul_i32 s{t+4}, s{t+4}, 40
s_mul_i32 s{t+5}, s{sCB}, 5
s_add_u32 s{t+4}, s{t+4}, s{t+5}
s_lshl_b32 s{sXS}, s{t+4}, 10
s_lshl_b32 s{t+4}, s{sRB}, 2
s_add_u32 s{t+4}, s{t+4}, s{sW}
s_mul_i32 s{sXA}, s{t+4}, 40960
s_lshl_b32 s{sHB}, s{t+4}, 11
s_add_u32 s{sHB}, s{sHB}, {ST2_O}
v_lshrrev_b32 v66, 5, v{vL}
v_bfe_u32 v63, v{vL}, 4, 1
v_lshlrev_b32 v63, 10, v63
v_lshl_add_u32 v63, v66, 8, v63
v_lshl_add_u32 v{vHST}, v60, 4, v63
s_mul_i32 s{sFL}, s{sRB}, {8*CS}
s_add_u32 s{sFL}, s{sFL}, {FK}
s_and_b32 s{sREP}, s2, 7
s_mul_i32 s{sREP}, s{sREP}, {CS}
s_add_u32 s{sREP}, s{sREP}, {FP}
s_mov_b32 s{sINV}, {f32(1/640)}
""")
        a(f"s_lshl_b32 s{t+5}, s{sRB}, 1\ns_add_u32 s{t+5}, s{t+5}, s{sJH}\ns_mul_i32 s{t+5}, s{t+5}, 276480\ns_add_u32 s{t+5}, s{t+5}, {HF_O}")
        a(f"s_mul_i32 s{t+4}, s{sCB}, 276480\ns_add_u32 s{t+4}, s{t+4}, {W2P}\nv_add_u32 v{vWD}, s{t+4}, v{vL16}\nv_add_u32 v{vL16B}, 4096, v{vWD}\nv_add_u32 v{vXA}, s{sXA}, v{vL16}")
        for pt in range(4):
            a(f"s_add_u32 s{t+4}, s{sW}, {pt}\ns_and_b32 s{t+4}, s{t+4}, 3\ns_lshl_b32 s{t+4}, s{t+4}, 10\ns_add_u32 s{t+4}, s{t+4}, s{t+5}\nv_add_u32 v{vHL+pt}, s{t+4}, v{vL16}")
        a(f"""
s_lshl_b32 s{t+4}, s{sJH}, 3
s_add_u32 s{t+4}, s{t+4}, s{sCB}
s_lshl_b32 s{t+6}, s{t+4}, 1
s_add_u32 s{t+7}, s{t+4}, 12
s_min_u32 s{t+6}, s{t+6}, s{t+7}
s_lshl_b32 s{t+7}, s{sRB}, 1
s_lshr_b32 s{t+2}, s{sW}, 1
s_add_u32 s{t+2}, s{t+2}, s{t+7}
s_mul_i32 s{t+2}, s{t+2}, 276480
s_and_b32 s{t}, s{sW}, 1
s_lshl_b32 s{t}, s{t}, 11
s_add_u32 s{t+2}, s{t+2}, s{t}
s_add_u32 s{t+2}, s{t+2}, {HF_O}
""")
        for tt in (1, 3, 4, 5, 6):
            a(f"s_add_u32 s{sTB+tt}, s{sTB+tt-1}, 40960")
        for tt in range(7):
            if tt < 3:
                a(f"s_mul_i32 s{t}, s{t+4}, 3\ns_add_u32 s{t}, s{t}, {tt}")
            elif tt < 5:
                a(f"s_lshl_b32 s{t}, s{t+4}, 1\ns_add_u32 s{t}, s{t}, {45+tt}")
            else:
                a(f"s_add_u32 s{t}, s{t+6}, {75+tt}")
            a(f"s_and_b32 s{t+5}, s{t}, 1\ns_lshl_b32 s{t+5}, s{t+5}, 9\ns_lshr_b32 s{t}, s{t}, 1\ns_mul_i32 s{t}, s{t}, 5120\ns_add_u32 s{t}, s{t}, s{t+5}\ns_add_u32 s{sHS+tt}, s{t}, s{t+2}")
        a(f"s_cmp_ge_u32 s{t+4}, 12\ns_cselect_b32 s{sTB+6}, {DUMMY}, s{sTB+6}\ns_cselect_b32 s{sHS+6}, {DUMMY}, s{sHS+6}")
        a(f"s_mul_i32 s{t}, s{t+1}, 43\ns_lshr_b32 s{t}, s{t}, 8\ns_mul_i32 s{t}, s{t}, 6\ns_sub_u32 s{t}, s{t+1}, s{t}\ns_mul_i32 s{t+2}, s{sW}, 6")
        for i in range(6):
            a(f"s_add_u32 s{t+5}, s{t}, s{t+2}\ns_mul_i32 s{sK+i}, s{t+5}, 5120\ns_add_u32 s{t}, s{t}, 1\ns_cmp_eq_u32 s{t}, 6\ns_cselect_b32 s{t}, 0, s{t}")
        a(f"s_lshl_b32 s{t+2}, s{sW}, 2\ns_add_u32 s{t+2}, s{t+2}, 24")
        for i in range(4):
            a(f"s_add_u32 s{t}, s{t+1}, {i}\ns_and_b32 s{t}, s{t}, 3\ns_add_u32 s{t}, s{t}, s{t+2}\ns_mul_i32 s{sK+6+i}, s{t}, 5120")
        a(f"s_lshl_b32 s{t}, s{sW}, 2\ns_min_u32 s{t}, s{t}, 11\ns_add_u32 s{t}, s{t}, 40\ns_mul_i32 s{sK+10}, s{t}, 5120")
        for i in range(11, 14):
            a(f"s_add_u32 s{sK+i}, s{sK+i-1}, 5120")
        a(f"s_cmp_ge_u32 s{sW}, 2\ns_cselect_b32 s{sK+13}, {DUMMY}, s{sK+13}")

    def res_loads(self):
        a, vm = self.a, self.vm
        L = [(lambda d: (lambda: vm.issue(f"buffer_load_dwordx2 v[{vXR+2*d}:{vXR+2*d+1}], v{vOUT}, s[{QS}:{QS+3}], 0 offen offset:{32*d}")))(d) for d in range(5)]
        L.append(lambda: vm.issue(f"v_and_b32 v{vC0}, 15, v{vL}\nv_lshlrev_b32 v{vC0}, 3, v{vC0}\nbuffer_load_dwordx2 v[{vC0}:{vC1}], v{vC0}, s[{WS}:{WS+3}], s{sWB} offen sc1"))

        def dma(lds, so, pre=""):
            def f():
                a(f"s_add_u32 m0, s{sM0}, {(lds - RING) & 0xffffffff}\n" + (pre or "s_nop 0"))
                vm.issue(f"buffer_load_dwordx4 v{vT16}, s[{WS}:{WS+3}], {so} offen sc1 lds")
            return f
        for c in range(10):
            for t in range(3 if self.p["t2early"] else 2):
                L.append(dma(RES + 8192 * c + 4096 * t if t < 2 else RING + 4096 * c, f"s{sT+5}", f"s_add_u32 s{sT+5}, s{sTB+t}, s{sCH+c}"))

        def ext01():
            l = a.label("ex")
            a(f"s_cmp_ge_u32 s{sW}, 2\ns_cbranch_scc1 {l}\ns_sub_u32 m0, s{sM0}, {RING}\ns_nop 0")
            a(f"buffer_load_dwordx4 v{vT16}, s[{WS}:{WS+3}], s{sEX} offen sc1 lds\n{l}:")
        return L[:6] + [ext01] + L[6:]

    def poison_stx(self):
        a, P_ = self.a, vET + 8
        a(f"v_mov_b32 v{P_}, -1\nv_mov_b32 v{P_+1}, -1\ns_mov_b32 s{sT+6}, {STX}\ns_mov_b64 exec, 0xffff")
        self.vm.issue(f"buffer_store_dwordx2 v[{P_}:{P_+1}], v{vST}, s[{WS}:{WS+3}], s{sT+6} offen sc1")
        a("s_mov_b64 exec, -1")

    def swap_pairs(self, base):
        return [f"v_permlane16_swap_b32 v{base+4*q+i}, v{base+4*q+2+i}" for q in range(3) for i in range(2)]

    def res_shadow(self):
        a = self.a
        l = a.label("nores")
        a(f"s_cmp_eq_u32 s{sW}, 0\ns_cbranch_scc1 {l}")
        pieces = [(RES + 8192 * c + 4096 * t, f"s_add_u32 s{{d}}, s{sTB+t}, s{sCH+c}") for c in range(10) for t in range(2)]
        pieces += [(0, f"s_mov_b32 s{{d}}, s{sEX}")]
        for q in range(0, 21, 3):
            for w in range(1, 4):
                lds, code = pieces[q + w - 1]
                a(code.format(d=sT + w) + f"\ns_mov_b32 s{sT+3+w}, {lds}")
            a(f"s_cmp_eq_u32 s{sW}, 2\ns_cselect_b32 s{sT+1}, s{sT+2}, s{sT+1}\ns_cselect_b32 s{sT+4}, s{sT+5}, s{sT+4}")
            a(f"s_cmp_eq_u32 s{sW}, 3\ns_cselect_b32 s{sT+1}, s{sT+3}, s{sT+1}\ns_cselect_b32 s{sT+4}, s{sT+6}, s{sT+4}")
            a(f"s_mov_b32 m0, s{sT+4}\ns_nop 0")
            for i in range(4):
                if q == 18 and i == 2:
                    a(f"s_cbranch_scc1 {l}")
                a(f"buffer_load_dwordx4 v{vL16}, s[{WS}:{WS+3}], s{sT+1} offen offset:{1024*i} sc1 lds")
        a(l + ":")

    def w1_shadow(self, n=10):
        a = self.a
        l = a.label("nosh")
        a(f"s_cmp_eq_u32 s{sW}, 0\ns_cbranch_scc1 {l}")
        for q in range((n + 2) // 3):
            if q < 3:
                a(f"s_cmp_eq_u32 s{sW}, 2\ns_cselect_b32 s{sT+1}, s{sCH+3*q+1}, s{sCH+3*q}\ns_cmp_eq_u32 s{sW}, 3\ns_cselect_b32 s{sT+1}, s{sCH+3*q+2}, s{sT+1}")
            else:
                a(f"s_cmp_lg_u32 s{sW}, 1\ns_cbranch_scc1 {l}\ns_mov_b32 s{sT+1}, s{sCH+9}")
            a(f"s_lshl_b32 s{sT+2}, s{sW}, 12\ns_add_u32 m0, s{sT+2}, {RING+4096*(3*q-1)}\ns_add_u32 s{sT+1}, s{sT+1}, s{sTB+2}")
            for i in range(4):
                a(f"buffer_load_dwordx4 v{vL16}, s[{WS}:{WS+3}], s{sT+1} offen offset:{1024*i} sc1 lds")
        a(l + ":")

    def e1(self):
        a, vm, lg = self.a, self.vm, self.lg
        a(f"""v_lshrrev_b32 v60, 3, v0
v_and_b32 v61, 7, v0
v_mul_u32_u24 v62, {KS}, v60
v_lshl_add_u32 v62, v61, 4, v62
s_lshl_b32 s{sT+2}, s{sW}, 5
s_sub_u32 s{sT+2}, s{sYO}, s{sT+2}
s_add_u32 s{sT}, s{sT+2}, {32*KS}
s_add_u32 s{sT+1}, s{sT+2}, {64*KS}
s_cmp_ge_u32 s{sW}, 2
s_cselect_b32 s{sT+1}, {DUMMY}, s{sT+1}""")
        tk = [vm.issue(f"buffer_load_dwordx4 {R('v', 48+4*i)}, v62, s[{WS}:{WS+3}], s{(sT+2, sT, sT+1)[i]} offen sc1") for i in range(3)]
        a(f"""v_mul_u32_u24 v60, 160, v60
v_lshl_add_u32 v60, v61, 4, v60
v_add_u32 v60, {RING+40960}, v60
v_lshrrev_b32 v61, 2, v{vL}
v_mul_u32_u24 v61, 160, v61
v_and_b32 v62, 3, v{vL}
v_lshl_add_u32 v61, v62, 3, v61
s_lshl_b32 s{sT}, s{sW}, 5
s_add_u32 s{sT}, s{sT}, {RING+40960}
v_add_u32 v61, s{sT}, v61""")
        XV = vG2
        for d in range(10):
            a(f"v_lshlrev_b32 v{XV+2*d}, 16, v{vXR+d}\nv_and_b32 v{XV+2*d+1}, 0xffff0000, v{vXR+d}")
        for i in range(3):
            vm.wait(tk[i])
            lg.issue(f"ds_write_b128 v60, {R('v', 48+4*i)} offset:{5120*i}")
        lg.all()
        a("s_barrier")
        for d in range(5):
            lg.issue(f"ds_read_b64_tr_b16 v[{vY+2*d}:{vY+2*d+1}], v61 offset:{2560*d}")
        lg.all()

    def e_post(self, layer):
        a, vm = self.a, self.vm
        XV, T = vG2, vG2 + 20
        self.st("epost%d" % layer)
        a(f"v_mul_f32 v{vR}, v{vC0}, v{vC1}")
        for d in range(10):
            x0 = XV + 2 * d
            a(f"""v_lshlrev_b32 v{T}, 16, v{vY+d}
v_and_b32 v{T+1}, 0xffff0000, v{vY+d}
v_pk_fma_f32 v[{T+2}:{T+3}], v[{x0}:{x0+1}], v[{vC0}:{vC1}], v[{vR}:{vR+1}] op_sel:[0,1,0] op_sel_hi:[1,1,0] neg_lo:[0,0,1] neg_hi:[0,0,1]
v_pk_fma_f32 v[{x0}:{x0+1}], v[{T+2}:{T+3}], v[{T}:{T+1}], v[{x0}:{x0+1}]
v_cvt_pk_bf16_f32 v{vXR+d}, v{x0}, v{x0+1}""")
            if d in (3, 7, 9):
                q = d // 4
                if q == 2:
                    a(f"s_add_u32 s{sT}, s{sXS}, 4096")
                a("s_nop 1\n" + "\n".join(self.swap_pairs(vXR)[2 * q:2 * q + 2]))
                if q == 2:
                    a("s_mov_b32 exec_lo, 0xffff\ns_mov_b32 exec_hi, 0xffff")
                so = f"s{sXS} offen offset:{2048*q}" if q < 2 else f"s{sT} offen"
                vm.issue(f"buffer_store_dwordx4 {R('v', vXR+4*q)}, v{vXST}, s[{LS}:{LS+3}], {so} {self.p['hs']}")
                if q == 2:
                    a("s_mov_b64 exec, -1")
        self.row_sums(XV, T)
        a(f"s_mov_b32 s{sT}, {ST2_O}\ns_mov_b64 exec, 0xffff")
        tok = vm.issue(f"buffer_store_dwordx2 v[{T+4}:{T+5}], v{vST}, s[{LS}:{LS+3}], s{sT} offen {self.p['hs']}")
        a("s_mov_b64 exec, -1")
        self.st("xst%d" % layer)
        a("s_waitcnt vmcnt(0)\ns_barrier")
        self.st("bar0%d" % layer)
        self.signal(0)
        if not (layer == 0 and self.p["t2early"]):
            self.w1_shadow(self.p["nsh"][layer])
        self.wait0(f"s{sFL}", 0, 16)
        a("s_barrier")
        vm.reset()
        self.st("join%d" % layer)
        if layer == 0 and self.p.get("diag_delay"):
            mask, n = self.p["diag_delay"]
            l = a.label("dly")
            a(f"s_and_b32 s{sT}, s{sRB}, {mask}\ns_cbranch_scc0 {l}\ns_sleep {n}\n{l}:")

    def g1(self, layer):
        a, vm, lg, p = self.a, self.vm, self.lg, self.p
        S_ = Sched(p["cap1"], p["lead"], p["lag"])
        KO = p["ko"]
        seq = [(t, c, i) for c in range(KO) for i in range(4) for t in range(3)]
        if p["head"]:
            seq[:12] = [(t, 0, i) for i in range(4) for t in range(2)] + [(2, 0, i) for i in range(4)]
        for t in range(3):
            seq += [(t, c, i) for c in range(KO, 10) for i in range(4)] + [(t, None, None)]
        for t in range(3, 7):
            seq += [(t, c, i) for c in range(10) for i in range(4)] + [(t, None, None)]
        N = len(seq)
        fill_of = lambda t, c: -1 if t < 2 else 10 * (t - 2) + c
        AH, WE, VC = p["ah"], p["we"], p["vcost"]
        WR = [vWF + 4 * i for i in range(6)] + [vET + 12, vET + 16]
        wf = lambda n: R("v", WR[n % 8])
        xt, rt, ft = {}, {}, {}
        em = lambda s: ((lambda: a(s)), cost_of(s))

        def xload(k):
            c, i = divmod(k, 4)
            return [(lambda: xt.__setitem__(k, vm.issue(f"buffer_load_dwordx4 {R('a', 4*k)}, v{vXA}, s[{LS}:{LS+3}], s{sCH+c} offen offset:{1024*i} sc1")), VC)]

        def rd(n):
            def f():
                t, c, i = seq[n]
                if c is None:
                    a_ = f"v{vL16} offset:{1024*t}"
                else:
                    idx = fill_of(t, c)
                    assert (idx in cert if t > 2 else c in certc), (n, idx)
                    off = (RES + 8192 * c + 4096 * t if t < 2 else RING + (idx % NSLOT) * 4096) + 1024 * i
                    a_ = f"v{(vL16, vRD, vRD + 1)[off // 65536]} offset:{off % 65536}"
                rt[n] = lg.issue(f"ds_read_b128 {wf(n)}, {a_}")
            return f

        NS = p["nsh"][layer]
        cb_ = {12 * c - AH - 1: [c] for c in range(max(NS, 1), KO)}
        if NS < 10:
            cb_[12 * KO - AH - 1] = list(range(max(KO, NS), 10))
        else:
            cb_.update({47: [], 12 * KO - 1: []})
        if NS >= 5 and 47 not in cb_:
            cb_[47] = []
        bars = sorted(cb_) + [122 - AH, 142, 163, 183, p["fe_pub"], 224, 240, p["fm_pub"]]
        wt1, certc = {}, set(range(max(NS, 1)))

        def wpiece(t, c):
            lds = RES + 8192 * c + 4096 * t if t < 2 else RING + 4096 * c
            return [em(f"s_add_u32 s{sT+4}, s{sTB+t}, s{sCH+c}"),
                    (lambda: wt1.__setitem__(c, vm.issue(f"s_add_u32 m0, s{sM0}, {(lds - RING) & 0xffffffff}\ns_nop 0\nbuffer_load_dwordx4 v{vT16}, s[{WS}:{WS+3}], s{sT+4} offen sc1 lds")), VC + 1.5)]

        def chunk(c):
            return (wpiece(2, c) if c >= NS else []) + [x for i in range(4) for x in xload(4 * c + i)]
        last_use = {}
        for n, (t, c, i) in enumerate(seq):
            if c is not None:
                last_use[fill_of(t, c)] = n

        def fill(idx):
            t, c = 2 + idx // 10, idx % 10
            e = 0 if idx < NSLOT else min(b for b in bars if b >= last_use[idx - NSLOT]) + 1
            L = [em(f"v_add_u32 v{vTB}, s{sTB+t}, v{vT16}")] if c == 0 else []
            m = f"s_add_u32 m0, s{sM0}, {(idx % NSLOT) * 4096}"
            ld = f"buffer_load_dwordx4 v{vTB}, s[{WS}:{WS+3}], s{sCH+c} offen sc1 lds"
            if idx < p["f_split"]:
                return L + [(lambda: ft.__setitem__(idx, vm.issue(m + "\ns_nop 0\n" + ld)), VC + 1.5, e)]

            def load():
                last = [x.strip() for x in a.text if " m0," in x][-1]
                pre = "" if last == m else m + "\n"
                ft[idx] = vm.issue(pre + ("s_nop 0\n" if pre or a.text[-1].strip() == m else "") + ld)
            return L + [em(m) + (e,), (load, VC, e)]

        cert, est = set(), {}

        def bar(k):
            def f():
                nxt = bars[k + 1] if k + 1 < len(bars) else N
                need = {fill_of(*seq[n][:2]) for n in range(min(N, nxt + AH + 1)) if seq[n][1] is not None}
                need = [i for i in need if i >= 10]
                if need:
                    vm.wait(max(ft[i] for i in need))
                for c in cb_.get(bars[k], []):
                    vm.wait(wt1[c])
                    certc.add(c)
                if bars[k] == p["fe_pub"]:
                    vm.wait(est[2])
                if bars[k] == p["fm_pub"]:
                    vm.wait(est[4])
                a("s_barrier")
                cert.update(need)
                if bars[k] == p["fe_pub"]:
                    self.signal(1)
                if bars[k] == p["fm_pub"]:
                    self.signal(3)
            return f

        def mf(n):
            def f():
                t, c, i = seq[n]
                acc = vACC + 16 * (t % 4 if t < 4 else t - 4)
                if n % WE == 0:
                    lg.wait(rt[min(n + WE - 1, N - 1)])
                lg.wait(rt[n])
                if c is None:
                    b = R("v", vEXT)
                else:
                    vm.wait(xt[4 * c + i])
                    b = R("a", 16 * c + 4 * i)
                cin = "0" if (c == 0 and i == 0) else f"v[{acc}:{acc+15}]"
                a(f"v_mfma_f32_32x32x16_bf16 v[{acc}:{acc+15}], {wf(n)}, {b}, {cin}")
            return f

        def epi(t):
            acc = vACC + 16 * (t % 4 if t < 4 else t - 4)
            o = vET + 4 + 4 * (t & 1)
            L = []
            for e in range(0, 8, 2):
                g0, g1_, u0, u1, t0, t1 = acc + e, acc + e + 1, acc + 8 + e, acc + 9 + e, vET + (e & 2), vET + (e & 2) + 1
                L += [f"v_mul_f32 v{t0}, v{g0}, v{g0}", f"v_mul_f32 v{t1}, v{g1_}, v{g1_}",
                      f"v_fma_f32 v{t0}, v{t0}, v{vC1}, v{vC0}", f"v_fma_f32 v{t1}, v{t1}, v{vC1}, v{vC0}",
                      f"v_mul_f32 v{t0}, v{t0}, v{g0}", f"v_mul_f32 v{t1}, v{t1}, v{g1_}",
                      f"v_exp_f32 v{t0}, v{t0}", f"v_exp_f32 v{t1}, v{t1}",
                      f"v_mul_f32 v{u0}, v{g0}, v{u0}",
                      f"v_fma_f32 v{t0}, v{t0}, v{vR}, v{vR}", f"v_fma_f32 v{t1}, v{t1}, v{vR}, v{vR}",
                      f"v_rcp_f32 v{t0}, v{t0}", f"v_rcp_f32 v{t1}, v{t1}",
                      f"v_mul_f32 v{u1}, v{g1_}, v{u1}",
                      f"v_mul_f32 v{u0}, v{u0}, v{t0}", f"v_mul_f32 v{u1}, v{u1}, v{t1}",
                      f"v_cvt_pk_bf16_f32 v{o + e // 2}, v{u0}, v{u1}"]

            def store():
                est[t] = vm.issue(f"buffer_store_dwordx4 {R('v', o)}, v{vHST}, s[{LS}:{LS+3}], s{sHS+t} offen {p['hs_h']}")
            return [em(s) for s in L] + [(store, VC)]

        T = vET
        for c in range(p["c_ahead"]):
            for f in chunk(c):
                f[0]()
        a(f"v_and_b32 v{T+8}, 15, v{vL}\nv_lshlrev_b32 v{T+8}, 3, v{T+8}\nv_lshrrev_b32 v{T+9}, 5, v{vL}\nv_lshl_add_u32 v{T+8}, v{T+9}, 9, v{T+8}\nv_bfe_u32 v{T+9}, v{vL}, 4, 1\nv_lshl_add_u32 v{T+8}, v{T+9}, 10, v{T+8}")
        ts = [vm.issue(f"buffer_load_dwordx2 v[{T+2*h}:{T+2*h+1}], v{T+8}, s[{LS}:{LS+3}], s{sHB} offen offset:{128*h} sc1") for h in range(4)]
        if p["head"]:
            S_.add(1.05, lambda: a("s_barrier"))
        else:
            vm.wait(xt[0])
            a("s_barrier")
        for n in range(AH):
            rd(n)()

        def stats():
            a(f"v_add_f32 v{T}, v{T}, v{T+2}\nv_add_f32 v{T+1}, v{T+1}, v{T+3}\nv_add_f32 v{T+4}, v{T+4}, v{T+6}\nv_add_f32 v{T+5}, v{T+5}, v{T+7}")
            a(f"v_add_f32 v{T}, v{T}, v{T+4}\nv_add_f32 v{T+1}, v{T+1}, v{T+5}")
            self.row_reduce([T, T + 1], T + 2, halves=(32,))
            self.moments(T, T + 1, T + 2)
            c0 = -2 * math.log2(math.e) * math.sqrt(2 / math.pi)
            a(f"""v_rcp_f32 v{T+2}, v{T+1}
v_mul_f32 v{vR}, v{T+1}, v{T+1}
v_xor_b32 v{T}, 0x80000000, v{T}
v_mul_f32 v{vC0}, {f32(c0)}, v{T+2}
v_mul_f32 v{T+3}, v{T+2}, v{T+2}
v_lshrrev_b32 v{T+4}, 16, v{T}
v_mul_f32 v{T+3}, v{T+3}, v{T+2}
v_or_b32 v{T}, v{T}, v{T+4}
v_mul_f32 v{vC1}, {f32(c0*0.044715)}, v{T+3}
v_mov_b32 v{vEXT}, v{T}
v_mov_b32 v{vEXT+1}, v{T+4}
v_mov_b32 v{vEXT+2}, v{T}
v_mov_b32 v{vEXT+3}, v{T+4}""")
        cut = len(a.text)
        stats()
        lines = a.text[cut:]; del a.text[cut:]
        S_.stream(2, 80, [em(x) for x in self.swap_pairs(vXR)] + [(lambda: vm.wait(ts[3]), 1, 20)] + [em(x.strip()) for x in lines], deadline=12 * KO - 4)

        if layer == 0:
            def ext_rest():
                l = a.label("ex")
                a(f"s_sub_u32 m0, s{sM0}, {RING-2048}\ns_nop 0")
                vm.issue(f"buffer_load_dwordx4 v{vT16}, s[{WS}:{WS+3}], s{sEX6} offen sc1 lds")
                a(f"s_cmp_lg_u32 s{sW}, 0\ns_cbranch_scc1 {l}\ns_add_u32 s{sT+5}, s{sEX6}, 4096\ns_cmp_eq_u32 s{sTB+6}, {DUMMY}\ns_cselect_b32 s{sT+5}, {DUMMY}, s{sT+5}\ns_movk_i32 m0, 6144\ns_nop 0")
                a(f"buffer_load_dwordx4 v{vL16}, s[{WS}:{WS+3}], s{sT+5} offen sc1 lds\n{l}:")
            S_.add(1.5, ext_rest, 6)
            S_.add(100.6, self.poison_stx, 6)

        for c in range(p["c_ahead"], 10):
            lo = int(p["c_pace"] * (c - p["c_ahead"]))
            L = chunk(c)
            for q, (f, cst) in enumerate(L):
                S_.add(lo + int(q * p["c_pace"] / len(L)) + 0.2, f, cst)
        for n in range(AH, N):
            S_.add(n - AH + 0.1, rd(n))
        for k, b in enumerate(bars):
            S_.add(b + 0.6, bar(k), 2)
        fl = lambda lo, hi: [x for r in range(lo, hi) for x in fill(r)]
        S_.stream(p["f_lo"], p["f_lo"] + 1, fl(10, 50), pace=p["f_pace"])
        E = []
        e0 = 12 * KO + 4 * (10 - KO) + 4
        w, w2 = (p["e2_hi"] - e0) / 3, (p["e4_hi"] - p["e2_hi"]) / 2
        for t in range(6):
            lo, hi = (e0 + w * t, e0 + w * (t + 1)) if t < 3 else (p["e2_hi"] + w2 * (t - 3), p["e2_hi"] + w2 * (t - 2)) if t < 5 else (248, p["e5_hi"])
            S_.stream(int(lo), hi, epi(t), deadline=(160, 200, p["fe_pub"] - 8, 244, p["fm_pub"] - 8, None)[t])
        if layer == 0:
            self.wt = {}
            self.gate(S_, f"s{sREP}", FP3 - FP, 92, p["wd_lo"] - 20.4, p["wd_lo"] - 0.4)
            S_.stream(p["wd_lo"], p["wd_hi"], [x for k in range(49) for x in self.wload(k, self.wslots[k])])

        self.gate(S_, f"s{sFL}", 256, 16, p["fe_poll"] + 0.6, p["fe_chk"] + 0.6)
        self.ht = {}
        self.free = [("a", 4 * k) for k in range(19)]
        L = []
        for k in range(16):
            L += [x + (247 + k,) for x in self.hload(k // 4, k % 4)]
        for k in range(49, 49 + p["wd_early"]):
            L += [x + (247 + 19 + k - 49,) for x in self.wload(k, ("a", 76 + 4 * (k - 49)))]
        S_.stream(p["fe_chk"] + 1, N, L)
        self.probes(S_, "g1%d" % layer)
        S_.run([mf(n) for n in range(N)], pre=lambda n: 0.75 if n % WE == 0 else 0)
        self.load1 = S_.load
        acc, o, t0 = vACC + 32, vET + 4, vET
        bc = lambda r: (f"v[{r & ~1}:{(r & ~1) + 1}]", r & 1)
        for e in range(0, 8, 2):
            g, u, t = f"v[{acc+e}:{acc+e+1}]", f"v[{acc+8+e}:{acc+9+e}]", f"v[{t0+(e&2)}:{t0+(e&2)+1}]"
            tl = t0 + (e & 2)
            a(f"""v_pk_mul_f32 {t}, {g}, {g}
v_pk_fma_f32 {t}, {t}, v[{vC0}:{vC1}], v[{vC0}:{vC1}] op_sel:[0,1,0] op_sel_hi:[1,1,0]
v_pk_mul_f32 {t}, {t}, {g}
v_exp_f32 v{tl}, v{tl}
v_exp_f32 v{tl+1}, v{tl+1}
v_pk_mul_f32 {u}, {g}, {u}
v_pk_fma_f32 {t}, {t}, v[{vR}:{vR+1}], v[{vR}:{vR+1}] op_sel_hi:[1,0,0]
v_rcp_f32 v{tl}, v{tl}
v_rcp_f32 v{tl+1}, v{tl+1}
s_nop 0
v_pk_mul_f32 {u}, {u}, {t}
v_cvt_pk_bf16_f32 v{o+e//2}, v{acc+8+e}, v{acc+9+e}""")
        epi(6)[-1][0]()
        self.last_store = est[6]

    def wload(self, k, slot):
        s, d = divmod(k, 5)
        va = f"v{vWD}" if d < 4 else f"v{vL16B}"
        return [(lambda: self.wt.__setitem__(k, (self.vm.issue(f"buffer_load_dwordx4 {R(*slot)}, {va}, s[{WS}:{WS+3}], s{sK+s} offen offset:{1024*(d%4)} sc1"), slot)), self.p["vcost"])]

    def hload(self, s, pt):
        def f():
            slot = self.free.pop(0)
            self.ht[(s, pt)] = (self.vm.issue(f"buffer_load_dwordx4 {R(*slot)}, v{vHL+pt}, s[{LS}:{LS+3}], s{sK+s} offen sc1"), slot)
        return [(f, self.p["vcost"])]

    def g2(self, layer):
        a, vm, lg, p = self.a, self.vm, self.lg, self.p
        if layer == 1:
            self.wt.update({k: (None, self.wslots[k]) for k in range(49)})
        self.free += [("v", vWF + 4 * i) for i in range(5)]
        seq = [(0, pt, d) for pt in (1, 2, 3, 0) for d in range(5)] + [(s, pt, d) for s in range(1, 14 - p["tl"]) for pt in range(4) for d in range(5)]
        seq += [(s, pt, d) for pt in (1, 2, 3, 0) for s in range(14 - p["tl"], 14) for d in range(5)]
        N = len(seq)
        S_ = Sched(p["cap2"], 1, 6)
        L = []
        for s in range(4, 14):
            e = p["fl_chk"] + 1 if s >= 10 else p["fm_chk"] + 1 if s >= 6 else 0
            e = max(e, 20 * (s - p["look"]))
            L += [x + (e,) for pt in range(4) for x in self.hload(s, pt)]
        S_.stream(0, 20 * (14 - p["look"]), L, pace=p["pace2"])
        W = [x for k in range(49 + p["wd_early"], 70) for x in self.wload(k, ("a", 76 + 4 * (k - 49)))]
        if p["w2b"]:
            nb, lo, hi = p["w2b"]
            S_.stream(lo, hi, W[len(W) - nb:])
            W = W[:len(W) - nb]
        S_.stream(p["w2_lo"], p["w2_hi"], W)

        S_.spread(0.2, 12, [(lambda x: (lambda: a(x)))(f"v_lshlrev_b32 v{vG2+2*d}, 16, v{vXR+d}\nv_and_b32 v{vG2+2*d+1}, 0xffff0000, v{vXR+d}") for d in range(10)])

        def pub():
            vm.wait(self.last_store)
            a("s_barrier")
            self.signal(2)
        S_.add(p["fl_pub"] + 0.2, pub)
        self.gate(S_, f"s{sFL}", 768, 16, p["fm_poll"] + 0.2, p["fm_chk"] + 0.2)
        self.gate(S_, f"s{sFL}", 512, 16, p["fl_poll"] + 0.2, p["fl_chk"] + 0.2)
        vA = vWF + 20
        if layer == 0 and p["warm"]:
            S_.add(200.6, lambda: vm.issue(self.cload(f"s{sFL}", 1024)))
        if layer == 0 and p["t2pf"]:
            def pf():
                a(f"s_and_b32 s{sT+1}, s{sRB}, 3\ns_lshl_b32 s{sT+1}, s{sT+1}, 2\ns_add_u32 s{sT+1}, s{sT+1}, s{sW}\ns_mul_i32 s{sT+1}, s{sT+1}, 2560\ns_add_u32 s{sT+1}, s{sT+1}, s{sTB+2}")
                a(f"v_lshlrev_b32 v{vPOLL}, 7, v{vL}\ns_mov_b64 exec, 0xfffff")
                vm.issue(f"buffer_load_dword v{vPOLL}, v{vPOLL}, s[{WS}:{WS+3}], s{sT+1} offen sc1")
                a("s_mov_b64 exec, -1")
            S_.add(p["t2pf"] + 0.6, pf)

        def addr():
            L = []
            for pt in range(1, 4):
                L += [f"s_add_u32 s{sT+1}, s{sW}, {pt}\ns_and_b32 s{sT+1}, s{sT+1}, 3", f"s_mul_i32 s{sT+1}, s{sT+1}, 15360\ns_add_u32 s{sT+1}, s{sT+1}, {RING + 5120 * (pt - 1)}", f"v_add_u32 v{vA+pt}, s{sT+1}, v{vL16}"]
            return L + [f"s_mul_i32 s{sT+1}, s{sW}, 15360\ns_add_u32 s{sT+1}, s{sT+1}, {RING}", f"v_add_u32 v{vA}, s{sT+1}, v{vL16}"]
        S_.spread(170.2, 190, [(lambda x: (lambda: a(x)))(x) for x in addr()])
        for q, pt in enumerate((1, 2, 3)):
            b = 280 - 20 * p["tl"] + 5 * p["tl"] * (q + 1)
            S_.spread(b + 3.2, b + 2 + 5 * p["tl"],
                      [(lambda pt, d: (lambda: lg.issue(f"ds_write_b128 v{vA+pt}, {R('v', vG2 + 20 * pt + 4 * d)} offset:{1024*d}")))(pt, d) for d in range(5)])

        def mf(n):
            def f():
                s, pt, d = seq[n]
                wtok, wslot = self.wt[5 * s + d]
                htok, hslot = self.ht[(s, pt)]
                vm.wait(wtok); vm.wait(htok)
                acc = vG2 + 20 * pt + 4 * d
                cin = "0" if s == 0 and pt else R("v", acc)
                a(f"v_mfma_f32_16x16x32_bf16 {R('v', acc)}, {R(*wslot)}, {R(*hslot)}, {cin}")
                if d == 4:
                    self.free.append(hslot)
            return f
        self.probes(S_, "g2%d" % layer)
        S_.run([mf(n) for n in range(N)])
        lg.all()
        self.st("g2end%d" % layer)
        a("s_barrier")
        tr = []
        for q in range(3):
            for d in range(5):
                tr.append(lg.issue(f"ds_read_b128 {R('v', vG2 + 20 * (q + 1) + 4 * d)}, v{vA} offset:{5120*q+1024*d}"))
        XV = vG2
        for q in range(3):
            for d in range(5):
                lg.wait(tr[5 * q + d])
                for r in (0, 2):
                    x = XV + 4 * d + r
                    a(f"v_pk_add_f32 v[{x}:{x+1}], v[{x}:{x+1}], v[{x+20*(q+1)}:{x+20*(q+1)+1}]")

    def exchange(self):
        a, vm = self.a, self.vm
        XV, T = vG2, vG2 + 20
        self.st("red")
        self.row_sums(XV, T)
        wt = f"s_mov_b64 exec, 0xffff\nbuffer_store_dwordx2 v[{T+4}:{T+5}], v{vST}, s[{WS}:{WS+3}], s{sT} offen sc1\ns_mov_b64 exec, -1"
        a(f"s_mov_b32 s{sT}, {STX}\ns_mov_b64 exec, 0xffff")
        a(f"buffer_store_dwordx2 v[{T+4}:{T+5}], v{vST}, s[{WS}:{WS+3}], s{sT} offen {self.p['hs_e']}")
        l, done, nx = a.label("xch"), a.label("xok"), a.label("xnx")
        a("s_mov_b64 exec, -1")
        self.st("pub")
        a(f"""s_movk_i32 s{sSP}, {SPIN}
{l}:
buffer_load_dwordx2 v[{T}:{T+1}], v{vSTX}, s[{WS}:{WS+3}], 0 offen sc1
buffer_load_dwordx2 v[{T+2}:{T+3}], v{vSTX}, s[{WS}:{WS+3}], 0 offen offset:128 sc1
s_waitcnt vmcnt(0)
v_max_u32 v{T+6}, v{T+1}, v{T+3}
v_cmp_eq_u32 vcc, -1, v{T+6}
s_and_b64 vcc, exec, vcc
s_cbranch_vccz {done}
s_cmpk_lg_u32 s{sSP}, {SPIN - self.p['xk']}
s_cbranch_scc1 {nx}
{wt}
{nx}:
s_sub_u32 s{sSP}, s{sSP}, 1
s_cbranch_scc0 {l}
{done}:
{wt}
v_add_f32 v{T}, v{T}, v{T+2}
v_add_f32 v{T+1}, v{T+1}, v{T+3}""")
        vm.reset()
        self.st("polled")
        self.row_reduce([T, T + 1], T + 2)
        self.moments(T, T + 1, T + 2)
        a(f"v_rcp_f32 v{vC1}, v{T+1}\nv_mov_b32 v{vC0}, v{T}")
        a(f"s_add_u32 s{LS}, s{LS}, {LSTEP}\ns_addc_u32 s{LS+1}, s{LS+1}, 0\ns_add_u32 s{sFL}, s{sFL}, 1024")

    def final(self):
        a = self.a
        XV, O = vG2, vWF
        a(f"v_lshrrev_b32 v{O+12}, 4, v{vL}\nv_and_b32 v{O+13}, 1, v{O+12}\nv_mul_u32_u24 v{O+13}, 24, v{O+13}\nv_add_u32 v{vOUT}, v{vOUT}, v{O+13}")
        for q in range(3):
            for d in range(4 if q < 2 else 2):
                a(f"v_cvt_pk_bf16_f32 v{O+4*q+d}, v{XV+8*q+2*d}, v{XV+8*q+2*d+1}")
            a("s_nop 1\n" + "\n".join(self.swap_pairs(O)[2 * q:2 * q + 2]))
            if q == 2:
                a("s_mov_b32 exec_lo, 0xffff\ns_mov_b32 exec_hi, 0xffff")
            a(f"buffer_store_dwordx4 {R('v', O+4*q)}, v{vOUT}, s[{OUT}:{OUT+3}], 0 offen offset:{64*q} {self.p['out_flags']}")
        a("s_mov_b64 exec, -1")

    def body(self):
        for layer in range(2):
            self.e_post(layer)
            self.g1(layer)
            self.st("g1end%d" % layer)
            self.g2(layer)
            if layer == 0:
                self.exchange()
                self.st("xch")
        self.final()
        self.st("end")

    def tails(self):
        for slow, fn in self.tail:
            self.a(slow + ":")
            fn()
```

```python
MB = 1 << 20
S, D, F = 2048, 640, 1728
KS = 4224
KVT = 0
YT = 4 * MB
W1P = 8 * MB
W1X = 13 * MB
W2P = 14 * MB
QST = 17 * MB
STX = 18 * MB
EPOCH = 19 * MB
INIT = EPOCH + 256
CS = 256
CNT = EPOCH + 4096
FA = CNT
FY = CNT + 16 * CS
FP = CNT + 32 * CS
FP3 = CNT + 40 * CS
FK = CNT + 48 * CS
LBASE, LSTEP = 32 * MB, 16 * MB
XF_O = 0
ST2_O = 3 * MB
FLAGS_O = 3 * MB + MB // 2
HF_O = 4 * MB
XF = (LBASE + XF_O, LBASE + LSTEP + XF_O)
ST2 = (LBASE + ST2_O, LBASE + LSTEP + ST2_O)
HF = (LBASE + HF_O, LBASE + LSTEP + HF_O)
FLAGS = (LBASE + FLAGS_O, LBASE + LSTEP + FLAGS_O)
FLAG_BYTES = 16 * 1024


def tile_owner(T):
    if T < 32:
        return T >> 1, T & 1
    T -= 32
    return (T // 5, 2 + T % 5) if T < 60 else (12 + (T - 60) // 4, 2 + (T - 60) % 4)


def tile_kslot(T):
    j, t = tile_owner(T)
    idx = 3 * j + t if t < 3 else 48 + 2 * j + t - 3 if t < 5 else 80 + min(2 * j, 12 + j) + t - 5
    return idx >> 1, idx & 1
```
